```python
import torch

def _softmax(x, axis=-1):
    return torch.softmax(x, dim=axis)
def _gelu(x):
    return torch.nn.functional.gelu(x, approximate="tanh")
def _silu(x):
    return torch.nn.functional.silu(x)
def _sigmoid(x):
    return torch.sigmoid(x)
def _layernorm(x, axis=-1, eps=1e-5):
    m = x.mean(dim=axis, keepdim=True)
    v = x.var(dim=axis, keepdim=True, unbiased=False)
    return (x - m) / torch.sqrt(v + eps)
def _scatter_add(tgt, idx, src, axis=0):
    return tgt.clone().index_add_(axis, idx, src)
def _segment_sum(src, seg, n):
    out = torch.zeros((n,) + src.shape[1:], dtype=src.dtype)
    return out.index_add_(0, seg, src)
def _pad(x, pw):
    flat = tuple(v for pair in reversed(pw) for v in pair)
    return torch.nn.functional.pad(x, flat)

kernel_name = 'standalone__gqa_softmax__sampling'

def setup_inputs():

    _w = (lambda a: (lambda t: t.to(torch.bfloat16) if t.is_floating_point() else t)(torch.as_tensor(a)))
    B, Hq, Hkv, Sq, Sk, D = 8, 32, 8, 4, 8192, 128
    return {
        "q": _w((lambda *s: torch.randn(*s, dtype=torch.bfloat16) * 0.8)(B, Hq, Sq, D)),
        "k": _w((lambda *s: torch.randn(*s, dtype=torch.bfloat16) * 0.8)(B, Hkv, Sk, D)),
        "v": _w((lambda *s: torch.randn(*s, dtype=torch.bfloat16) * 0.05)(B, Hkv, Sk, D)),
    }

def reference(q, k, v):
    B, Hq, Sq, D = q.shape
    Hkv = k.shape[1]
    rep = Hq // Hkv
    k = (lambda x, n, axis: torch.repeat_interleave(x, n, dim=axis))(k, rep, axis=1)
    v = (lambda x, n, axis: torch.repeat_interleave(x, n, dim=axis))(v, rep, axis=1)
    scale = D ** -0.5
    scores = torch.einsum("bhqd,bhkd->bhqk", q, k) * scale
    p = _softmax(scores, axis=-1)
    return torch.einsum("bhqk,bhkd->bhqd", p, v)
```

```python
import sys, math, struct

NAME = "standalone__gqa_softmax__sampling"
HEADER = """; Kernarg layout for this problem (48 bytes, ptrs only, base s[0:1]):
"""

def f2u(x):
    return struct.unpack("<I", struct.pack("<f", x))[0]

def gen(NW=4, R=2, POLK="nt", POLV="nt", ROT=0, BLOCKED=0, LDS_MIN=0, WGMAP=0, STAMP=0):
    L = []
    e = L.append
    NI = 64 // NW
    lds = max(NW * 8192 + NW * 512 + 64, LDS_MIN)
    KA = (R > 2)
    vLane, vKoff, vVoff, vTmp, vTmp2, vM, vL, vMx, vAl, vNm = 1, 2, 3, 4, 5, 6, 7, 8, 9, 10
    vS = 12
    vP = 20
    vQ = 24
    vO = 40
    vT = 72
    vV = 88
    nv = vV + R * 32
    if KA:
        kreg = lambda b, t, s: f"a[{b*32+t*16+s*4}:{b*32+t*16+s*4+3}]"
        accum = (nv + 3) // 4 * 4
        total = accum + R * 32
    else:
        vK = nv
        nv += R * 32
        kreg = lambda b, t, s: f"v[{vK+b*32+t*16+s*4}:{vK+b*32+t*16+s*4+3}]"
        accum = (nv + 3) // 4 * 4
        total = nv
    vreg = lambda b, j: f"v[{vV+b*32+j*4}:{vV+b*32+j*4+3}]"
    r4 = lambda x: f"v[{x}:{x+3}]"
    sK, sV, sQ, sWS, sOUT, sDBG = 16, 20, 24, 28, 32, 36
    sW, sG, sSp, sCnt, sA, sB, sC, sPL, sPH, sIt, sT0, sT1, sT2, sLin = 40, 41, 42, 43, 44, 45, 46, 47, 48, 49, 50, 51, 52, 53
    srd = lambda x: f"s[{x}:{x+3}]"

    e(HEADER + f"; @launch grid=(256,1,1) block=({64*NW},1,1) lds={lds}")
    e('.amdgcn_target "amdgcn-amd-amdhsa--gfx950"')
    e(".text")
    e(f".globl {NAME}_kernel")
    e(".p2align 8")
    e(f".type {NAME}_kernel,@function")
    e(f"{NAME}_kernel:")
    e("    s_cmp_ge_u32 s2, 256")
    e("    s_cbranch_scc1 L_end")
    e("    s_load_dwordx4 s[4:7], s[0:1], 0")
    e("    s_load_dwordx4 s[8:11], s[0:1], 16")
    e("    s_load_dwordx4 s[12:15], s[0:1], 32")
    if STAMP:
        e("    s_memrealtime s[60:61]")
    e(f"    v_lshrrev_b32 v{vTmp}, 6, v0")
    e(f"    v_and_b32 v{vLane}, 63, v0")
    e(f"    v_readfirstlane_b32 s{sW}, v{vTmp}")
    if WGMAP == 0:
        e(f"    s_lshr_b32 s{sG}, s2, 2")
        e(f"    s_and_b32 s{sSp}, s2, 3")
        e(f"    s_mov_b32 s{sLin}, s2")
    else:
        e(f"    s_and_b32 s{sG}, s2, 63")
        e(f"    s_lshr_b32 s{sSp}, s2, 6")
        e(f"    s_lshl_b32 s{sLin}, s{sG}, 2")
        e(f"    s_or_b32 s{sLin}, s{sLin}, s{sSp}")
    e(f"    v_lshlrev_b32 v{vVoff}, 4, v{vLane}            ; V: lane*16")
    e(f"    v_lshrrev_b32 v{vTmp}, 4, v{vLane}             ; g")
    e(f"    v_lshlrev_b32 v{vTmp}, 4, v{vTmp}              ; g*16")
    e(f"    v_and_b32 v{vTmp2}, 3, v{vLane}")
    e(f"    v_lshl_add_u32 v{vKoff}, v{vTmp2}, 10, v{vTmp}  ; (i&3)*1024 + g*16")
    e(f"    v_bfe_u32 v{vTmp2}, v{vLane}, 2, 2")
    e(f"    v_lshl_add_u32 v{vKoff}, v{vTmp2}, 8, v{vKoff}  ; + (i>>2)*256")
    e(f"    v_and_b32 v{vTmp2}, 15, v{vLane}")
    e(f"    v_lshl_add_u32 v{vTmp}, v{vTmp2}, 8, v{vTmp}    ; Q: i*256 + g*16")
    e(f"    s_lshl_b32 s{sT0}, s{sLin}, 19")
    e(f"    s_lshl_b32 s{sT1}, s{sG}, 12")
    e(f"    s_mov_b32 s{sK+2}, 0x80000")
    e(f"    s_mov_b32 s{sK+3}, 0x20000")
    e(f"    s_mov_b32 s{sV+2}, 0x80000")
    e(f"    s_mov_b32 s{sV+3}, 0x20000")
    e(f"    s_mov_b32 s{sQ+2}, 0x1000")
    e(f"    s_mov_b32 s{sQ+3}, 0x20000")
    if ROT:
        e(f"    s_mul_i32 s{sIt}, s2, {ROT}")
        e(f"    s_and_b32 s{sIt}, s{sIt}, {NI-1}")
    else:
        e(f"    s_mov_b32 s{sIt}, 0")
    if BLOCKED:
        e(f"    s_mul_i32 s{sT2}, s{sW}, {NI*8192}")
        step_sh = 13
    else:
        e(f"    s_lshl_b32 s{sT2}, s{sW}, 13")
        step_sh = 13 + int(math.log2(NW))

    def next_off():
        e(f"    s_lshl_b32 s{sA}, s{sIt}, {step_sh}")
        e(f"    s_add_u32 s{sA}, s{sA}, s{sT2}")
        e(f"    s_add_u32 s{sB}, s{sA}, 4096")
        e(f"    s_add_u32 s{sIt}, s{sIt}, 1")
        if ROT:
            e(f"    s_and_b32 s{sIt}, s{sIt}, {NI-1}")
    def loadK(b):
        for t in range(2):
            for s in range(4):
                e(f"    buffer_load_dwordx4 {kreg(b,t,s)}, v{vKoff}, {srd(sK)}, s{sA+t} offen offset:{s*64} {POLK}")
    def loadV(b):
        for t in range(2):
            for r in range(4):
                e(f"    buffer_load_dwordx4 {vreg(b,t*4+r)}, v{vVoff}, {srd(sV)}, s{sA+t} offen offset:{r*1024} {POLV}")

    next_off()
    e("    s_waitcnt lgkmcnt(0)")
    e(f"    s_add_u32 s{sK}, s6, s{sT0}")
    e(f"    s_addc_u32 s{sK+1}, s7, 0")
    e(f"    s_add_u32 s{sV}, s8, s{sT0}")
    e(f"    s_addc_u32 s{sV+1}, s9, 0")
    e(f"    s_add_u32 s{sQ}, s4, s{sT1}")
    e(f"    s_addc_u32 s{sQ+1}, s5, 0")
    for s in range(4):
        e(f"    buffer_load_dwordx4 {r4(vQ+s*4)}, v{vTmp}, {srd(sQ)}, 0 offen offset:{s*64}")
    for b in range(R):
        if b:
            next_off()
        loadK(b)
        loadV(b)
    e(f"    s_add_u32 s{sOUT}, s10, s{sT1}")
    e(f"    s_addc_u32 s{sOUT+1}, s11, 0")
    e(f"    s_mov_b32 s{sOUT+2}, 0x1000")
    e(f"    s_mov_b32 s{sOUT+3}, 0x20000")
    e(f"    s_lshl_b32 s{sT0}, s{sG}, 16")
    e(f"    s_add_u32 s{sWS}, s14, s{sT0}")
    e(f"    s_addc_u32 s{sWS+1}, s15, 0")
    e(f"    s_mov_b32 s{sWS+2}, 0x10000")
    e(f"    s_mov_b32 s{sWS+3}, 0x20000")
    e(f"    s_mov_b32 s{sDBG}, s12")
    e(f"    s_mov_b32 s{sDBG+1}, s13")
    e(f"    s_mov_b32 s{sDBG+2}, 0x100")
    e(f"    s_mov_b32 s{sDBG+3}, 0x20000")
    c = (128 ** -0.5) * math.log2(math.e)
    e(f"    s_mov_b32 s{sC}, {hex(f2u(c))}      ; D^-0.5 * log2(e)")
    e(f"    s_mov_b32 s{sPL}, 0x05040100")
    e(f"    s_mov_b32 s{sPH}, 0x07060302")
    e(f"    v_mov_b32 v{vM}, 0xff800000")
    e(f"    v_mov_b32 v{vL}, 0")
    for i in range(32):
        e(f"    v_mov_b32 v{vO+i}, 0")

    def xreduce(reg, op):
        e(f"    v_mov_b32 v{vTmp}, v{reg}")
        e("    s_nop 1")
        e(f"    v_permlane32_swap_b32 v{vTmp}, v{reg}")
        e("    s_nop 1")
        e(f"    {op} v{reg}, v{vTmp}, v{reg}")
        e(f"    v_mov_b32 v{vTmp}, v{reg}")
        e("    s_nop 1")
        e(f"    v_permlane16_swap_b32 v{vTmp}, v{reg}")
        e("    s_nop 1")
        e(f"    {op} v{reg}, v{vTmp}, v{reg}")

    def tile(b, pre, wk, wv):
        e(f"    s_waitcnt vmcnt({wk})")
        for s in range(4):
            for t in range(2):
                cin = "0" if s == 0 else r4(vS + t * 4)
                e(f"    v_mfma_f32_16x16x32_bf16 {r4(vS+t*4)}, {kreg(b,t,s)}, {r4(vQ+s*4)}, {cin}")
        if pre:
            next_off()
            loadK(b)
        else:
            e("    s_nop 7")
        e(f"    v_max3_f32 v{vMx}, v{vS}, v{vS+1}, v{vS+2}")
        e(f"    v_max3_f32 v{vMx}, v{vMx}, v{vS+3}, v{vS+4}")
        e(f"    v_max3_f32 v{vMx}, v{vMx}, v{vS+5}, v{vS+6}")
        e(f"    v_max3_f32 v{vMx}, v{vMx}, v{vS+7}, v{vM}")
        xreduce(vMx, "v_max_f32")
        e(f"    v_mul_f32 v{vNm}, s{sC}, v{vMx}")
        e(f"    v_fma_f32 v{vAl}, v{vM}, s{sC}, -v{vNm}")
        e(f"    v_mov_b32 v{vM}, v{vMx}")
        e(f"    v_exp_f32 v{vAl}, v{vAl}")
        for j in range(8):
            e(f"    v_fma_f32 v{vS+j}, v{vS+j}, s{sC}, -v{vNm}")
        for j in range(8):
            e(f"    v_exp_f32 v{vS+j}, v{vS+j}")
        for i in range(32):
            e(f"    v_mul_f32 v{vO+i}, v{vAl}, v{vO+i}")
        e(f"    v_fma_f32 v{vL}, v{vL}, v{vAl}, v{vS}")
        e(f"    v_add_f32 v{vTmp}, v{vS+1}, v{vS+2}")
        e(f"    v_add_f32 v{vTmp2}, v{vS+3}, v{vS+4}")
        e(f"    v_add_f32 v{vL}, v{vL}, v{vS+5}")
        e(f"    v_add_f32 v{vTmp}, v{vTmp}, v{vS+6}")
        e(f"    v_add_f32 v{vTmp2}, v{vTmp2}, v{vS+7}")
        e(f"    v_add_f32 v{vL}, v{vL}, v{vTmp}")
        e(f"    v_add_f32 v{vL}, v{vL}, v{vTmp2}")
        for u in range(4):
            e(f"    v_cvt_pk_bf16_f32 v{vP+u}, v{vS+2*u}, v{vS+2*u+1}")
        e(f"    s_waitcnt vmcnt({wv})")
        def perms(w):
            tb = vT + (w & 1) * 8
            for h in range(2):
                for u in range(4):
                    lo = vV + b * 32 + (2 * u) * 4 + w
                    hi = vV + b * 32 + (2 * u + 1) * 4 + w
                    e(f"    v_perm_b32 v{tb+h*4+u}, v{hi}, v{lo}, s{sPL+h}")
        def pv(w):
            tb = vT + (w & 1) * 8
            for h in range(2):
                dj = 2 * w + h
                e(f"    v_mfma_f32_16x16x32_bf16 {r4(vO+dj*4)}, {r4(tb+h*4)}, {r4(vP)}, {r4(vO+dj*4)}")
        perms(0); perms(1); pv(0); perms(2); pv(1); perms(3); pv(2)
        if pre:
            loadV(b)
        else:
            e("    s_nop 1")
        pv(3)

    wfull = 8 + 16 * (R - 1)
    npre = NI - R
    nloop = npre // R
    rem = npre - nloop * R
    if nloop > 0:
        e(f"    s_mov_b32 s{sCnt}, {nloop}")
        e("L_loop:")
        for b in range(R):
            tile(b, True, wfull, wfull)
        e(f"    s_sub_u32 s{sCnt}, s{sCnt}, 1")
        e(f"    s_cmp_lg_u32 s{sCnt}, 0")
        e("    s_cbranch_scc1 L_loop")
    b = 0
    for _ in range(rem):
        tile(b, True, wfull, wfull)
        b = (b + 1) % R
    for k in range(R):
        tile(b, False, 8 + 16 * (R - 1 - k), 16 * (R - 1 - k))
        b = (b + 1) % R
    if STAMP:
        e("    s_memrealtime s[62:63]")
    xreduce(vL, "v_add_f32")
    e(f"    s_lshl_b32 s{sT0}, s{sW}, 13")
    e(f"    v_add_u32 v{vTmp}, s{sT0}, v{vVoff}          ; w*8192 + lane*16")
    e(f"    s_lshl_b32 s{sT0}, s{sW}, 9")
    e(f"    v_lshlrev_b32 v{vKoff}, 3, v{vLane}          ; lane*8")
    e(f"    v_add_u32 v{vTmp2}, s{sT0}, v{vKoff}         ; w*512 + lane*8")
    for dj in range(8):
        e(f"    ds_write_b128 v{vTmp}, {r4(vO+dj*4)} offset:{dj*1024}")
    mlbase = NW * 8192
    e(f"    v_add_u32 v{vMx}, {mlbase}, v{vTmp2}")
    e(f"    ds_write_b64 v{vMx}, v[{vM}:{vM+1}]")
    e("    s_waitcnt lgkmcnt(0)")
    e("    s_barrier")
    if NW > 4:
        e(f"    s_cmp_ge_u32 s{sW}, 4")
        e("    s_cbranch_scc1 L_end")
    vX = vV
    vML = vQ
    e(f"    s_lshl_b32 s{sT0}, s{sW}, 11")
    e(f"    v_add_u32 v{vTmp}, s{sT0}, v{vVoff}          ; w'*2048 + lane*16")
    e(f"    v_add_u32 v{vMx}, {mlbase}, v{vKoff}")
    for w in range(NW):
        e(f"    ds_read_b64 v[{vML+2*w}:{vML+2*w+1}], v{vMx} offset:{w*512}")
    for w in range(NW):
        e(f"    ds_read_b128 {r4(vX+w*8)}, v{vTmp} offset:{w*8192}")
        e(f"    ds_read_b128 {r4(vX+w*8+4)}, v{vTmp} offset:{w*8192+1024}")

    def combine(n, wait_ml, wait_all):
        e(wait_ml)
        e(f"    v_max_f32 v{vM}, v{vML}, v{vML+2}")
        for w in range(2, n):
            e(f"    v_max_f32 v{vM}, v{vM}, v{vML+2*w}")
        e(f"    v_mul_f32 v{vNm}, s{sC}, v{vM}")
        for w in range(n):
            e(f"    v_fma_f32 v{vML+2*w}, v{vML+2*w}, s{sC}, -v{vNm}")
        for w in range(n):
            e(f"    v_exp_f32 v{vML+2*w}, v{vML+2*w}")
        e("    s_nop 0")
        e(f"    v_mul_f32 v{vL}, v{vML}, v{vML+1}")
        for w in range(1, n):
            e(f"    v_fmac_f32 v{vL}, v{vML+2*w}, v{vML+2*w+1}")
        e(wait_all)
        for j in range(8):
            e(f"    v_mul_f32 v{vO+j}, v{vML}, v{vX+j}")
        for w in range(1, n):
            for j in range(8):
                e(f"    v_fmac_f32 v{vO+j}, v{vML+2*w}, v{vX+w*8+j}")
    combine(NW, f"    s_waitcnt lgkmcnt({min(2*NW,15)})", "    s_waitcnt lgkmcnt(0)")
    e(f"    s_lshl_b32 s{sT0}, s{sSp}, 14")
    e(f"    v_add_u32 v{vTmp2}, 8192, v{vTmp2}           ; 8192 + w'*512 + lane*8")
    e(f"    buffer_store_dwordx4 {r4(vO)}, v{vTmp}, {srd(sWS)}, s{sT0} offen sc1")
    e(f"    buffer_store_dwordx4 {r4(vO+4)}, v{vTmp}, {srd(sWS)}, s{sT0} offen offset:1024 sc1")
    e(f"    buffer_store_dwordx2 v[{vM}:{vM+1}], v{vTmp2}, {srd(sWS)}, s{sT0} offen sc1")
    e("    s_waitcnt vmcnt(0)")
    e("    s_barrier")
    flag = NW * 8192 + NW * 512
    e(f"    v_mov_b32 v{vS+2}, {flag}")
    e(f"    s_cmp_lg_u32 s{sW}, 0")
    e("    s_cbranch_scc1 L_wait_ticket")
    e(f"    s_lshl_b32 s{sT1}, s{sG}, 2")
    e(f"    v_mov_b32 v{vS}, 1")
    e(f"    v_mov_b32 v{vS+1}, s{sT1}")
    e("    s_mov_b64 exec, 1")
    e(f"    buffer_atomic_add v{vS}, v{vS+1}, {srd(sDBG)}, 0 offen sc0")
    e("    s_waitcnt vmcnt(0)")
    e(f"    ds_write_b32 v{vS+2}, v{vS}")
    e("    s_mov_b64 exec, -1")
    e("    s_waitcnt lgkmcnt(0)")
    e("L_wait_ticket:")
    e("    s_barrier")
    e(f"    ds_read_b32 v{vS}, v{vS+2}")
    e("    s_waitcnt lgkmcnt(0)")
    e(f"    v_readfirstlane_b32 s{sT1}, v{vS}")
    e(f"    s_cmp_lg_u32 s{sT1}, 3")
    e("    s_cbranch_scc1 L_fin")
    for k in range(1, 4):
        e(f"    s_add_u32 s{sT1}, s{sSp}, {k}")
        e(f"    s_and_b32 s{sT1}, s{sT1}, 3")
        e(f"    s_lshl_b32 s{sA+k-1 if k < 3 else sT2}, s{sT1}, 14")
    so = [sA, sB, sT2]
    for k in range(1, 4):
        e(f"    buffer_load_dwordx2 v[{vML+2*k}:{vML+2*k+1}], v{vTmp2}, {srd(sWS)}, s{so[k-1]} offen sc1")
    for k in range(1, 4):
        e(f"    buffer_load_dwordx4 {r4(vX+k*8)}, v{vTmp}, {srd(sWS)}, s{so[k-1]} offen sc1")
        e(f"    buffer_load_dwordx4 {r4(vX+k*8+4)}, v{vTmp}, {srd(sWS)}, s{so[k-1]} offen offset:1024 sc1")
    e(f"    v_mov_b32 v{vML}, v{vM}")
    e(f"    v_mov_b32 v{vML+1}, v{vL}")
    for j in range(8):
        e(f"    v_mov_b32 v{vX+j}, v{vO+j}")
    e(f"    v_and_b32 v{vS}, 15, v{vLane}")
    e(f"    v_lshrrev_b32 v{vS+1}, 4, v{vLane}")
    e(f"    v_lshlrev_b32 v{vS}, 8, v{vS}")
    e(f"    v_lshl_add_u32 v{vS}, v{vS+1}, 6, v{vS}")
    e(f"    s_lshl_b32 s{sT1}, s{sW}, 2")
    combine(4, "    s_waitcnt vmcnt(6)", "    s_waitcnt vmcnt(0)")
    e(f"    v_rcp_f32 v{vL}, v{vL}")
    e("    s_nop 0")
    for j in range(8):
        e(f"    v_mul_f32 v{vO+j}, v{vL}, v{vO+j}")
    for r in range(4):
        e(f"    v_cvt_pk_bf16_f32 v{vP+r}, v{vO+r}, v{vO+4+r}")
    for r in range(4):
        e(f"    buffer_store_dword v{vP+r}, v{vS}, {srd(sOUT)}, s{sT1} offen offset:{r*16}")
    e("L_fin:")
    if STAMP:
        e("    s_waitcnt vmcnt(0)")
        e("    s_memrealtime s[64:65]")
        e(f"    s_cmp_lg_u32 s{sW}, 0")
        e("    s_cbranch_scc1 L_end")
        e("    s_waitcnt lgkmcnt(0)")
        e("    s_mov_b64 exec, 1")
        e("    v_mov_b32 v20, s60")
        e("    v_mov_b32 v21, s62")
        e("    v_mov_b32 v22, s64")
        e("    s_getreg_b32 s66, hwreg(HW_REG_XCC_ID)")
        e("    v_mov_b32 v23, s66")
        e(f"    s_lshl_b32 s{sT0}, s{sSp}, 14")
        e(f"    v_mov_b32 v{vTmp}, 16320")
        e(f"    buffer_store_dwordx4 v[20:23], v{vTmp}, {srd(sWS)}, s{sT0} offen")
    e("L_end:")
    e("    s_endpgm")
    e('.section .rodata,"a"')
    e(".p2align 6")
    e(f".amdhsa_kernel {NAME}_kernel")
    e(f"  .amdhsa_next_free_vgpr {total}")
    e("  .amdhsa_next_free_sgpr 72")
    e(f"  .amdhsa_accum_offset {accum}")
    e("  .amdhsa_group_segment_fixed_size 0")
    e("  .amdhsa_kernarg_size 48")
    e("  .amdhsa_user_sgpr_count 2")
    e("  .amdhsa_user_sgpr_kernarg_segment_ptr 1")
    e("  .amdhsa_system_sgpr_workgroup_id_x 1")
    e(".end_amdhsa_kernel")
    return "\n".join(L) + "\n"

if __name__ == "__main__":
    out = sys.argv[1]
    kw = {}
    for a in sys.argv[2:]:
        k, v = a.split("=")
        kw[k] = v.replace("_", " ") if k.startswith("POL") else int(v)
    open(out, "w").write(gen(**kw))
```

```python
import sys, math, struct

NAME = "standalone__gqa_softmax__sampling"
HEADER = """; Kernarg layout for this problem (48 bytes, ptrs only, base s[0:1]):
"""

def f2u(x):
    return struct.unpack("<I", struct.pack("<f", x))[0]

def gen(NW=4, R=2, POLK="nt", POLV="nt", ROT=0, BLOCKED=0, LDS_MIN=0, WGMAP=0, STAMP=0):
    L = []
    e = L.append
    NI = 64 // NW
    lds = max(NW * 8192 + NW * 512 + 64, LDS_MIN)
    KA = (R > 2)
    vLane, vKoff, vVoff, vTmp, vTmp2, vM, vL, vMx, vAl, vNm = 1, 2, 3, 4, 5, 6, 7, 8, 9, 10
    vS = 12
    vP = 20
    vQ = 24
    vO = 40
    vT = 72
    vV = 88
    nv = vV + R * 32
    if KA:
        kreg = lambda b, t, s: f"a[{b*32+t*16+s*4}:{b*32+t*16+s*4+3}]"
        accum = (nv + 3) // 4 * 4
        total = accum + R * 32
    else:
        vK = nv
        nv += R * 32
        kreg = lambda b, t, s: f"v[{vK+b*32+t*16+s*4}:{vK+b*32+t*16+s*4+3}]"
        accum = (nv + 3) // 4 * 4
        total = nv
    vreg = lambda b, j: f"v[{vV+b*32+j*4}:{vV+b*32+j*4+3}]"
    r4 = lambda x: f"v[{x}:{x+3}]"
    sK, sV, sQ, sWS, sOUT, sDBG = 16, 20, 24, 28, 32, 36
    sW, sG, sSp, sCnt, sA, sB, sC, sPL, sPH, sIt, sT0, sT1, sT2, sLin = 40, 41, 42, 43, 44, 45, 46, 47, 48, 49, 50, 51, 52, 53
    srd = lambda x: f"s[{x}:{x+3}]"

    e(HEADER + f"; @launch grid=(256,1,1) block=({64*NW},1,1) lds={lds}")
    e('.amdgcn_target "amdgcn-amd-amdhsa--gfx950"')
    e(".text")
    e(f".globl {NAME}_kernel")
    e(".p2align 8")
    e(f".type {NAME}_kernel,@function")
    e(f"{NAME}_kernel:")
    e("    s_cmp_ge_u32 s2, 256")
    e("    s_cbranch_scc1 L_end")
    e("    s_load_dwordx4 s[4:7], s[0:1], 0")
    e("    s_load_dwordx4 s[8:11], s[0:1], 16")
    e("    s_load_dwordx4 s[12:15], s[0:1], 32")
    if STAMP:
        e("    s_memrealtime s[60:61]")
    e(f"    v_lshrrev_b32 v{vTmp}, 6, v0")
    e(f"    v_and_b32 v{vLane}, 63, v0")
    e(f"    v_readfirstlane_b32 s{sW}, v{vTmp}")
    if WGMAP == 0:
        e(f"    s_lshr_b32 s{sG}, s2, 2")
        e(f"    s_and_b32 s{sSp}, s2, 3")
        e(f"    s_mov_b32 s{sLin}, s2")
    else:
        e(f"    s_and_b32 s{sG}, s2, 63")
        e(f"    s_lshr_b32 s{sSp}, s2, 6")
        e(f"    s_lshl_b32 s{sLin}, s{sG}, 2")
        e(f"    s_or_b32 s{sLin}, s{sLin}, s{sSp}")
    e(f"    v_lshlrev_b32 v{vVoff}, 4, v{vLane}            ; V: lane*16")
    e(f"    v_lshrrev_b32 v{vTmp}, 4, v{vLane}             ; g")
    e(f"    v_lshlrev_b32 v{vTmp}, 4, v{vTmp}              ; g*16")
    e(f"    v_and_b32 v{vTmp2}, 3, v{vLane}")
    e(f"    v_lshl_add_u32 v{vKoff}, v{vTmp2}, 10, v{vTmp}  ; (i&3)*1024 + g*16")
    e(f"    v_bfe_u32 v{vTmp2}, v{vLane}, 2, 2")
    e(f"    v_lshl_add_u32 v{vKoff}, v{vTmp2}, 8, v{vKoff}  ; + (i>>2)*256")
    e(f"    v_and_b32 v{vTmp2}, 15, v{vLane}")
    e(f"    v_lshl_add_u32 v{vTmp}, v{vTmp2}, 8, v{vTmp}    ; Q: i*256 + g*16")
    e(f"    s_lshl_b32 s{sT0}, s{sLin}, 19")
    e(f"    s_lshl_b32 s{sT1}, s{sG}, 12")
    e(f"    s_mov_b32 s{sK+2}, 0x80000")
    e(f"    s_mov_b32 s{sK+3}, 0x20000")
    e(f"    s_mov_b32 s{sV+2}, 0x80000")
    e(f"    s_mov_b32 s{sV+3}, 0x20000")
    e(f"    s_mov_b32 s{sQ+2}, 0x1000")
    e(f"    s_mov_b32 s{sQ+3}, 0x20000")
    if ROT:
        e(f"    s_mul_i32 s{sIt}, s2, {ROT}")
        e(f"    s_and_b32 s{sIt}, s{sIt}, {NI-1}")
    else:
        e(f"    s_mov_b32 s{sIt}, 0")
    if BLOCKED:
        e(f"    s_mul_i32 s{sT2}, s{sW}, {NI*8192}")
        step_sh = 13
    else:
        e(f"    s_lshl_b32 s{sT2}, s{sW}, 13")
        step_sh = 13 + int(math.log2(NW))

    def next_off():
        e(f"    s_lshl_b32 s{sA}, s{sIt}, {step_sh}")
        e(f"    s_add_u32 s{sA}, s{sA}, s{sT2}")
        e(f"    s_add_u32 s{sB}, s{sA}, 4096")
        e(f"    s_add_u32 s{sIt}, s{sIt}, 1")
        if ROT:
            e(f"    s_and_b32 s{sIt}, s{sIt}, {NI-1}")
    def loadK(b):
        for t in range(2):
            for s in range(4):
                e(f"    buffer_load_dwordx4 {kreg(b,t,s)}, v{vKoff}, {srd(sK)}, s{sA+t} offen offset:{s*64} {POLK}")
    def loadV(b):
        for t in range(2):
            for r in range(4):
                e(f"    buffer_load_dwordx4 {vreg(b,t*4+r)}, v{vVoff}, {srd(sV)}, s{sA+t} offen offset:{r*1024} {POLV}")

    next_off()
    e("    s_waitcnt lgkmcnt(0)")
    e(f"    s_add_u32 s{sK}, s6, s{sT0}")
    e(f"    s_addc_u32 s{sK+1}, s7, 0")
    e(f"    s_add_u32 s{sV}, s8, s{sT0}")
    e(f"    s_addc_u32 s{sV+1}, s9, 0")
    e(f"    s_add_u32 s{sQ}, s4, s{sT1}")
    e(f"    s_addc_u32 s{sQ+1}, s5, 0")
    for s in range(4):
        e(f"    buffer_load_dwordx4 {r4(vQ+s*4)}, v{vTmp}, {srd(sQ)}, 0 offen offset:{s*64}")
    for b in range(R):
        if b:
            next_off()
        loadK(b)
        loadV(b)
    e(f"    s_add_u32 s{sOUT}, s10, s{sT1}")
    e(f"    s_addc_u32 s{sOUT+1}, s11, 0")
    e(f"    s_mov_b32 s{sOUT+2}, 0x1000")
    e(f"    s_mov_b32 s{sOUT+3}, 0x20000")
    e(f"    s_lshl_b32 s{sT0}, s{sG}, 16")
    e(f"    s_add_u32 s{sWS}, s14, s{sT0}")
    e(f"    s_addc_u32 s{sWS+1}, s15, 0")
    e(f"    s_mov_b32 s{sWS+2}, 0x10000")
    e(f"    s_mov_b32 s{sWS+3}, 0x20000")
    e(f"    s_mov_b32 s{sDBG}, s12")
    e(f"    s_mov_b32 s{sDBG+1}, s13")
    e(f"    s_mov_b32 s{sDBG+2}, 0x100")
    e(f"    s_mov_b32 s{sDBG+3}, 0x20000")
    c = (128 ** -0.5) * math.log2(math.e)
    e(f"    s_mov_b32 s{sC}, {hex(f2u(c))}      ; D^-0.5 * log2(e)")
    e(f"    s_mov_b32 s{sPL}, 0x05040100")
    e(f"    s_mov_b32 s{sPH}, 0x07060302")
    e(f"    v_mov_b32 v{vM}, 0xff800000")
    e(f"    v_mov_b32 v{vL}, 0")
    for i in range(32):
        e(f"    v_mov_b32 v{vO+i}, 0")

    def xreduce(reg, op):
        e(f"    v_mov_b32 v{vTmp}, v{reg}")
        e("    s_nop 1")
        e(f"    v_permlane32_swap_b32 v{vTmp}, v{reg}")
        e("    s_nop 1")
        e(f"    {op} v{reg}, v{vTmp}, v{reg}")
        e(f"    v_mov_b32 v{vTmp}, v{reg}")
        e("    s_nop 1")
        e(f"    v_permlane16_swap_b32 v{vTmp}, v{reg}")
        e("    s_nop 1")
        e(f"    {op} v{reg}, v{vTmp}, v{reg}")

    def tile(b, pre, wk, wv):
        e(f"    s_waitcnt vmcnt({wk})")
        for s in range(4):
            for t in range(2):
                cin = "0" if s == 0 else r4(vS + t * 4)
                e(f"    v_mfma_f32_16x16x32_bf16 {r4(vS+t*4)}, {kreg(b,t,s)}, {r4(vQ+s*4)}, {cin}")
        if pre:
            next_off()
            loadK(b)
        else:
            e("    s_nop 7")
        e(f"    v_max3_f32 v{vMx}, v{vS}, v{vS+1}, v{vS+2}")
        e(f"    v_max3_f32 v{vMx}, v{vMx}, v{vS+3}, v{vS+4}")
        e(f"    v_max3_f32 v{vMx}, v{vMx}, v{vS+5}, v{vS+6}")
        e(f"    v_max3_f32 v{vMx}, v{vMx}, v{vS+7}, v{vM}")
        xreduce(vMx, "v_max_f32")
        e(f"    v_mul_f32 v{vNm}, s{sC}, v{vMx}")
        e(f"    v_fma_f32 v{vAl}, v{vM}, s{sC}, -v{vNm}")
        e(f"    v_mov_b32 v{vM}, v{vMx}")
        e(f"    v_exp_f32 v{vAl}, v{vAl}")
        for j in range(8):
            e(f"    v_fma_f32 v{vS+j}, v{vS+j}, s{sC}, -v{vNm}")
        for j in range(8):
            e(f"    v_exp_f32 v{vS+j}, v{vS+j}")
        for i in range(32):
            e(f"    v_mul_f32 v{vO+i}, v{vAl}, v{vO+i}")
        e(f"    v_fma_f32 v{vL}, v{vL}, v{vAl}, v{vS}")
        e(f"    v_add_f32 v{vTmp}, v{vS+1}, v{vS+2}")
        e(f"    v_add_f32 v{vTmp2}, v{vS+3}, v{vS+4}")
        e(f"    v_add_f32 v{vL}, v{vL}, v{vS+5}")
        e(f"    v_add_f32 v{vTmp}, v{vTmp}, v{vS+6}")
        e(f"    v_add_f32 v{vTmp2}, v{vTmp2}, v{vS+7}")
        e(f"    v_add_f32 v{vL}, v{vL}, v{vTmp}")
        e(f"    v_add_f32 v{vL}, v{vL}, v{vTmp2}")
        for u in range(4):
            e(f"    v_cvt_pk_bf16_f32 v{vP+u}, v{vS+2*u}, v{vS+2*u+1}")
        e(f"    s_waitcnt vmcnt({wv})")
        def perms(w):
            tb = vT + (w & 1) * 8
            for h in range(2):
                for u in range(4):
                    lo = vV + b * 32 + (2 * u) * 4 + w
                    hi = vV + b * 32 + (2 * u + 1) * 4 + w
                    e(f"    v_perm_b32 v{tb+h*4+u}, v{hi}, v{lo}, s{sPL+h}")
        def pv(w):
            tb = vT + (w & 1) * 8
            for h in range(2):
                dj = 2 * w + h
                e(f"    v_mfma_f32_16x16x32_bf16 {r4(vO+dj*4)}, {r4(tb+h*4)}, {r4(vP)}, {r4(vO+dj*4)}")
        perms(0); perms(1); pv(0); perms(2); pv(1); perms(3); pv(2)
        if pre:
            loadV(b)
        else:
            e("    s_nop 1")
        pv(3)

    wfull = 8 + 16 * (R - 1)
    npre = NI - R
    nloop = npre // R
    rem = npre - nloop * R
    if nloop > 0:
        e(f"    s_mov_b32 s{sCnt}, {nloop}")
        e("L_loop:")
        for b in range(R):
            tile(b, True, wfull, wfull)
        e(f"    s_sub_u32 s{sCnt}, s{sCnt}, 1")
        e(f"    s_cmp_lg_u32 s{sCnt}, 0")
        e("    s_cbranch_scc1 L_loop")
    b = 0
    for _ in range(rem):
        tile(b, True, wfull, wfull)
        b = (b + 1) % R
    for k in range(R):
        tile(b, False, 8 + 16 * (R - 1 - k), 16 * (R - 1 - k))
        b = (b + 1) % R
    if STAMP:
        e("    s_memrealtime s[62:63]")
    xreduce(vL, "v_add_f32")
    e(f"    s_lshl_b32 s{sT0}, s{sW}, 13")
    e(f"    v_add_u32 v{vTmp}, s{sT0}, v{vVoff}          ; w*8192 + lane*16")
    e(f"    s_lshl_b32 s{sT0}, s{sW}, 9")
    e(f"    v_lshlrev_b32 v{vKoff}, 3, v{vLane}          ; lane*8")
    e(f"    v_add_u32 v{vTmp2}, s{sT0}, v{vKoff}         ; w*512 + lane*8")
    for dj in range(8):
        e(f"    ds_write_b128 v{vTmp}, {r4(vO+dj*4)} offset:{dj*1024}")
    mlbase = NW * 8192
    e(f"    v_add_u32 v{vMx}, {mlbase}, v{vTmp2}")
    e(f"    ds_write_b64 v{vMx}, v[{vM}:{vM+1}]")
    e("    s_waitcnt lgkmcnt(0)")
    e("    s_barrier")
    if NW > 4:
        e(f"    s_cmp_ge_u32 s{sW}, 4")
        e("    s_cbranch_scc1 L_end")
    vX = vV
    vML = vQ
    e(f"    s_lshl_b32 s{sT0}, s{sW}, 11")
    e(f"    v_add_u32 v{vTmp}, s{sT0}, v{vVoff}          ; w'*2048 + lane*16")
    e(f"    v_add_u32 v{vMx}, {mlbase}, v{vKoff}")
    for w in range(NW):
        e(f"    ds_read_b64 v[{vML+2*w}:{vML+2*w+1}], v{vMx} offset:{w*512}")
    for w in range(NW):
        e(f"    ds_read_b128 {r4(vX+w*8)}, v{vTmp} offset:{w*8192}")
        e(f"    ds_read_b128 {r4(vX+w*8+4)}, v{vTmp} offset:{w*8192+1024}")

    def combine(n, wait_ml, wait_all):
        e(wait_ml)
        e(f"    v_max_f32 v{vM}, v{vML}, v{vML+2}")
        for w in range(2, n):
            e(f"    v_max_f32 v{vM}, v{vM}, v{vML+2*w}")
        e(f"    v_mul_f32 v{vNm}, s{sC}, v{vM}")
        for w in range(n):
            e(f"    v_fma_f32 v{vML+2*w}, v{vML+2*w}, s{sC}, -v{vNm}")
        for w in range(n):
            e(f"    v_exp_f32 v{vML+2*w}, v{vML+2*w}")
        e("    s_nop 0")
        e(f"    v_mul_f32 v{vL}, v{vML}, v{vML+1}")
        for w in range(1, n):
            e(f"    v_fmac_f32 v{vL}, v{vML+2*w}, v{vML+2*w+1}")
        e(wait_all)
        for j in range(8):
            e(f"    v_mul_f32 v{vO+j}, v{vML}, v{vX+j}")
        for w in range(1, n):
            for j in range(8):
                e(f"    v_fmac_f32 v{vO+j}, v{vML+2*w}, v{vX+w*8+j}")
    combine(NW, f"    s_waitcnt lgkmcnt({min(2*NW,15)})", "    s_waitcnt lgkmcnt(0)")
    e(f"    s_lshl_b32 s{sT0}, s{sSp}, 14")
    e(f"    v_add_u32 v{vTmp2}, 8192, v{vTmp2}           ; 8192 + w'*512 + lane*8")
    e(f"    buffer_store_dwordx4 {r4(vO)}, v{vTmp}, {srd(sWS)}, s{sT0} offen sc1")
    e(f"    buffer_store_dwordx4 {r4(vO+4)}, v{vTmp}, {srd(sWS)}, s{sT0} offen offset:1024 sc1")
    e(f"    buffer_store_dwordx2 v[{vM}:{vM+1}], v{vTmp2}, {srd(sWS)}, s{sT0} offen sc1")
    e("    s_waitcnt vmcnt(0)")
    e("    s_barrier")
    flag = NW * 8192 + NW * 512
    e(f"    v_mov_b32 v{vS+2}, {flag}")
    e(f"    s_cmp_lg_u32 s{sW}, 0")
    e("    s_cbranch_scc1 L_wait_ticket")
    if STAMP == 2:
        e(f"    s_and_b32 s{sT1}, s{sG}, 60")
        e(f"    s_add_u32 s{sT1}, s{sT1}, 192")
        e(f"    s_and_b32 s68, s{sG}, 3")
        e(f"    s_lshl_b32 s68, s68, 3")
        e(f"    s_lshl_b32 s69, 1, s68")
        e(f"    v_mov_b32 v{vS}, s69")
    else:
        e(f"    s_lshl_b32 s{sT1}, s{sG}, 2")
        e(f"    v_mov_b32 v{vS}, 1")
    e(f"    v_mov_b32 v{vS+1}, s{sT1}")
    e("    s_mov_b64 exec, 1")
    e(f"    buffer_atomic_add v{vS}, v{vS+1}, {srd(sDBG)}, 0 offen sc0")
    e("    s_waitcnt vmcnt(0)")
    if STAMP == 2:
        e(f"    v_bfe_u32 v{vS}, v{vS}, s68, 8")
    e(f"    ds_write_b32 v{vS+2}, v{vS}")
    e("    s_mov_b64 exec, -1")
    e("    s_waitcnt lgkmcnt(0)")
    e("L_wait_ticket:")
    e("    s_barrier")
    e(f"    ds_read_b32 v{vS}, v{vS+2}")
    e("    s_waitcnt lgkmcnt(0)")
    e(f"    v_readfirstlane_b32 s{sT1}, v{vS}")
    e(f"    s_cmp_lg_u32 s{sT1}, 3")
    e("    s_cbranch_scc1 L_fin")
    for k in range(1, 4):
        e(f"    s_add_u32 s{sT1}, s{sSp}, {k}")
        e(f"    s_and_b32 s{sT1}, s{sT1}, 3")
        e(f"    s_lshl_b32 s{sA+k-1 if k < 3 else sT2}, s{sT1}, 14")
    so = [sA, sB, sT2]
    for k in range(1, 4):
        e(f"    buffer_load_dwordx2 v[{vML+2*k}:{vML+2*k+1}], v{vTmp2}, {srd(sWS)}, s{so[k-1]} offen sc1")
    for k in range(1, 4):
        e(f"    buffer_load_dwordx4 {r4(vX+k*8)}, v{vTmp}, {srd(sWS)}, s{so[k-1]} offen sc1")
        e(f"    buffer_load_dwordx4 {r4(vX+k*8+4)}, v{vTmp}, {srd(sWS)}, s{so[k-1]} offen offset:1024 sc1")
    e(f"    v_mov_b32 v{vML}, v{vM}")
    e(f"    v_mov_b32 v{vML+1}, v{vL}")
    for j in range(8):
        e(f"    v_mov_b32 v{vX+j}, v{vO+j}")
    e(f"    v_and_b32 v{vS}, 15, v{vLane}")
    e(f"    v_lshrrev_b32 v{vS+1}, 4, v{vLane}")
    e(f"    v_lshlrev_b32 v{vS}, 8, v{vS}")
    e(f"    v_lshl_add_u32 v{vS}, v{vS+1}, 6, v{vS}")
    e(f"    s_lshl_b32 s{sT1}, s{sW}, 2")
    combine(4, "    s_waitcnt vmcnt(6)", "    s_waitcnt vmcnt(0)")
    e(f"    v_rcp_f32 v{vL}, v{vL}")
    e("    s_nop 0")
    for j in range(8):
        e(f"    v_mul_f32 v{vO+j}, v{vL}, v{vO+j}")
    for r in range(4):
        e(f"    v_cvt_pk_bf16_f32 v{vP+r}, v{vO+r}, v{vO+4+r}")
    for r in range(4):
        e(f"    buffer_store_dword v{vP+r}, v{vS}, {srd(sOUT)}, s{sT1} offen offset:{r*16}")
    e("L_fin:")
    if STAMP:
        e("    s_waitcnt vmcnt(0)")
        e("    s_memrealtime s[64:65]")
        e(f"    s_cmp_lg_u32 s{sW}, 0")
        e("    s_cbranch_scc1 L_end")
        e("    s_waitcnt lgkmcnt(0)")
        e("    s_mov_b64 exec, 1")
        e("    v_mov_b32 v20, s60")
        e("    v_mov_b32 v21, s62")
        e("    v_mov_b32 v22, s64")
        e("    s_getreg_b32 s66, hwreg(HW_REG_XCC_ID)")
        e("    v_mov_b32 v23, s66")
        e(f"    s_lshl_b32 s{sT0}, s{sSp}, 14")
        e(f"    v_mov_b32 v{vTmp}, 16320")
        e(f"    buffer_store_dwordx4 v[20:23], v{vTmp}, {srd(sWS)}, s{sT0} offen")
        if STAMP == 2:
            e("    v_not_b32 v24, v20")
            e("    v_not_b32 v25, v21")
            e(f"    v_mov_b32 v{vTmp}, 0")
            for i, r in enumerate([24, 20, 25, 21, 22]):
                e(f"    buffer_atomic_umax v{r}, v{vTmp}, {srd(sDBG)}, 0 offen offset:{i*4}")
    e("L_end:")
    e("    s_endpgm")
    e('.section .rodata,"a"')
    e(".p2align 6")
    e(f".amdhsa_kernel {NAME}_kernel")
    e(f"  .amdhsa_next_free_vgpr {total}")
    e("  .amdhsa_next_free_sgpr 72")
    e(f"  .amdhsa_accum_offset {accum}")
    e("  .amdhsa_group_segment_fixed_size 0")
    e("  .amdhsa_kernarg_size 48")
    e("  .amdhsa_user_sgpr_count 2")
    e("  .amdhsa_user_sgpr_kernarg_segment_ptr 1")
    e("  .amdhsa_system_sgpr_workgroup_id_x 1")
    e(".end_amdhsa_kernel")
    return "\n".join(L) + "\n"

if __name__ == "__main__":
    out = sys.argv[1]
    kw = {}
    for a in sys.argv[2:]:
        k, v = a.split("=")
        kw[k] = v.replace("_", " ") if k.startswith("POL") else int(v)
    open(out, "w").write(gen(**kw))
```

```python
import sys, math, struct

NAME = "standalone__gqa_softmax__sampling"
HEADER = """; Kernarg layout for this problem (48 bytes, ptrs only, base s[0:1]):
"""

def f2u(x):
    return struct.unpack("<I", struct.pack("<f", x))[0]

def gen(NW=4, R=2, POLK="nt", POLV="nt", ROT=0, BLOCKED=0, LDS_MIN=0, WGMAP=0, STAMP=0):
    L = []
    e = L.append
    NI = 64 // NW
    lds = max(NW * 8192 + NW * 512 + 64, LDS_MIN)
    KA = (R > 2)
    vLane, vKoff, vVoff, vTmp, vTmp2, vM, vL, vMx, vAl, vNm = 1, 2, 3, 4, 5, 6, 7, 8, 9, 10
    vS = 12
    vP = 20
    vQ = 24
    vO = 40
    vT = 72
    vV = 88
    nv = vV + R * 32
    if KA:
        kreg = lambda b, t, s: f"a[{b*32+t*16+s*4}:{b*32+t*16+s*4+3}]"
        accum = (nv + 3) // 4 * 4
        total = accum + R * 32
    else:
        vK = nv
        nv += R * 32
        kreg = lambda b, t, s: f"v[{vK+b*32+t*16+s*4}:{vK+b*32+t*16+s*4+3}]"
        accum = (nv + 3) // 4 * 4
        total = nv
    vreg = lambda b, j: f"v[{vV+b*32+j*4}:{vV+b*32+j*4+3}]"
    r4 = lambda x: f"v[{x}:{x+3}]"
    sK, sV, sQ, sWS, sOUT, sDBG = 16, 20, 24, 28, 32, 36
    sW, sG, sSp, sCnt, sA, sB, sC, sPL, sPH, sIt, sT0, sT1, sT2, sLin = 40, 41, 42, 43, 44, 45, 46, 47, 48, 49, 50, 51, 52, 53
    srd = lambda x: f"s[{x}:{x+3}]"

    e(HEADER + f"; @launch grid=(256,1,1) block=({64*NW},1,1) lds={lds}")
    e('.amdgcn_target "amdgcn-amd-amdhsa--gfx950"')
    e(".text")
    e(f".globl {NAME}_kernel")
    e(".p2align 8")
    e(f".type {NAME}_kernel,@function")
    e(f"{NAME}_kernel:")
    e("    s_cmp_ge_u32 s2, 256")
    e("    s_cbranch_scc1 L_end")
    e("    s_load_dwordx4 s[4:7], s[0:1], 0")
    e("    s_load_dwordx4 s[8:11], s[0:1], 16")
    e("    s_load_dwordx4 s[12:15], s[0:1], 32")
    if STAMP:
        e("    s_memrealtime s[60:61]")
    e(f"    v_lshrrev_b32 v{vTmp}, 6, v0")
    e(f"    v_and_b32 v{vLane}, 63, v0")
    e(f"    v_readfirstlane_b32 s{sW}, v{vTmp}")
    if WGMAP == 0:
        e(f"    s_lshr_b32 s{sG}, s2, 2")
        e(f"    s_and_b32 s{sSp}, s2, 3")
        e(f"    s_mov_b32 s{sLin}, s2")
    else:
        e(f"    s_and_b32 s{sG}, s2, 63")
        e(f"    s_lshr_b32 s{sSp}, s2, 6")
        e(f"    s_lshl_b32 s{sLin}, s{sG}, 2")
        e(f"    s_or_b32 s{sLin}, s{sLin}, s{sSp}")
    e(f"    v_lshlrev_b32 v{vVoff}, 4, v{vLane}            ; V: lane*16")
    e(f"    v_lshrrev_b32 v{vTmp}, 4, v{vLane}             ; g")
    e(f"    v_lshlrev_b32 v{vTmp}, 4, v{vTmp}              ; g*16")
    e(f"    v_and_b32 v{vTmp2}, 3, v{vLane}")
    e(f"    v_lshl_add_u32 v{vKoff}, v{vTmp2}, 10, v{vTmp}  ; (i&3)*1024 + g*16")
    e(f"    v_bfe_u32 v{vTmp2}, v{vLane}, 2, 2")
    e(f"    v_lshl_add_u32 v{vKoff}, v{vTmp2}, 8, v{vKoff}  ; + (i>>2)*256")
    e(f"    v_and_b32 v{vTmp2}, 15, v{vLane}")
    e(f"    v_lshl_add_u32 v{vTmp}, v{vTmp2}, 8, v{vTmp}    ; Q: i*256 + g*16")
    e(f"    s_lshl_b32 s{sT0}, s{sLin}, 19")
    e(f"    s_lshl_b32 s{sT1}, s{sG}, 12")
    e(f"    s_mov_b32 s{sK+2}, 0x80000")
    e(f"    s_mov_b32 s{sK+3}, 0x20000")
    e(f"    s_mov_b32 s{sV+2}, 0x80000")
    e(f"    s_mov_b32 s{sV+3}, 0x20000")
    e(f"    s_mov_b32 s{sQ+2}, 0x1000")
    e(f"    s_mov_b32 s{sQ+3}, 0x20000")
    if ROT:
        e(f"    s_mul_i32 s{sIt}, s2, {ROT}")
        e(f"    s_and_b32 s{sIt}, s{sIt}, {NI-1}")
    else:
        e(f"    s_mov_b32 s{sIt}, 0")
    if BLOCKED:
        e(f"    s_mul_i32 s{sT2}, s{sW}, {NI*8192}")
        step_sh = 13
    else:
        e(f"    s_lshl_b32 s{sT2}, s{sW}, 13")
        step_sh = 13 + int(math.log2(NW))

    def next_off():
        e(f"    s_lshl_b32 s{sA}, s{sIt}, {step_sh}")
        e(f"    s_add_u32 s{sA}, s{sA}, s{sT2}")
        e(f"    s_add_u32 s{sB}, s{sA}, 4096")
        e(f"    s_add_u32 s{sIt}, s{sIt}, 1")
        if ROT:
            e(f"    s_and_b32 s{sIt}, s{sIt}, {NI-1}")
    def loadK(b):
        for t in range(2):
            for s in range(4):
                e(f"    buffer_load_dwordx4 {kreg(b,t,s)}, v{vKoff}, {srd(sK)}, s{sA+t} offen offset:{s*64} {POLK}")
    def loadV(b):
        for t in range(2):
            for r in range(4):
                e(f"    buffer_load_dwordx4 {vreg(b,t*4+r)}, v{vVoff}, {srd(sV)}, s{sA+t} offen offset:{r*1024} {POLV}")

    next_off()
    e("    s_waitcnt lgkmcnt(0)")
    e(f"    s_add_u32 s{sK}, s6, s{sT0}")
    e(f"    s_addc_u32 s{sK+1}, s7, 0")
    e(f"    s_add_u32 s{sV}, s8, s{sT0}")
    e(f"    s_addc_u32 s{sV+1}, s9, 0")
    e(f"    s_add_u32 s{sQ}, s4, s{sT1}")
    e(f"    s_addc_u32 s{sQ+1}, s5, 0")
    for s in range(4):
        e(f"    buffer_load_dwordx4 {r4(vQ+s*4)}, v{vTmp}, {srd(sQ)}, 0 offen offset:{s*64}")
    for b in range(R):
        if b:
            next_off()
        loadK(b)
        loadV(b)
    e(f"    s_add_u32 s{sOUT}, s10, s{sT1}")
    e(f"    s_addc_u32 s{sOUT+1}, s11, 0")
    e(f"    s_mov_b32 s{sOUT+2}, 0x1000")
    e(f"    s_mov_b32 s{sOUT+3}, 0x20000")
    e(f"    s_lshl_b32 s{sT0}, s{sG}, 16")
    e(f"    s_add_u32 s{sWS}, s14, s{sT0}")
    e(f"    s_addc_u32 s{sWS+1}, s15, 0")
    e(f"    s_mov_b32 s{sWS+2}, 0x10000")
    e(f"    s_mov_b32 s{sWS+3}, 0x20000")
    e(f"    s_mov_b32 s{sDBG}, s12")
    e(f"    s_mov_b32 s{sDBG+1}, s13")
    e(f"    s_mov_b32 s{sDBG+2}, 0x100")
    e(f"    s_mov_b32 s{sDBG+3}, 0x20000")
    c = (128 ** -0.5) * math.log2(math.e)
    e(f"    s_mov_b32 s{sC}, {hex(f2u(c))}      ; D^-0.5 * log2(e)")
    e(f"    s_mov_b32 s{sPL}, 0x05040100")
    e(f"    s_mov_b32 s{sPH}, 0x07060302")
    e(f"    v_mov_b32 v{vM}, 0xff800000")
    e(f"    v_mov_b32 v{vL}, 0")
    for i in range(32):
        e(f"    v_mov_b32 v{vO+i}, 0")

    def xreduce(reg, op):
        e(f"    v_mov_b32 v{vTmp}, v{reg}")
        e("    s_nop 1")
        e(f"    v_permlane32_swap_b32 v{vTmp}, v{reg}")
        e("    s_nop 1")
        e(f"    {op} v{reg}, v{vTmp}, v{reg}")
        e(f"    v_mov_b32 v{vTmp}, v{reg}")
        e("    s_nop 1")
        e(f"    v_permlane16_swap_b32 v{vTmp}, v{reg}")
        e("    s_nop 1")
        e(f"    {op} v{reg}, v{vTmp}, v{reg}")

    def tile(b, pre, wk, wv):
        e(f"    s_waitcnt vmcnt({wk})")
        for s in range(4):
            for t in range(2):
                cin = "0" if s == 0 else r4(vS + t * 4)
                e(f"    v_mfma_f32_16x16x32_bf16 {r4(vS+t*4)}, {kreg(b,t,s)}, {r4(vQ+s*4)}, {cin}")
        if pre:
            next_off()
            loadK(b)
        else:
            e("    s_nop 7")
        e(f"    v_max3_f32 v{vMx}, v{vS}, v{vS+1}, v{vS+2}")
        e(f"    v_max3_f32 v{vMx}, v{vMx}, v{vS+3}, v{vS+4}")
        e(f"    v_max3_f32 v{vMx}, v{vMx}, v{vS+5}, v{vS+6}")
        e(f"    v_max3_f32 v{vMx}, v{vMx}, v{vS+7}, v{vM}")
        xreduce(vMx, "v_max_f32")
        e(f"    v_mul_f32 v{vNm}, s{sC}, v{vMx}")
        e(f"    v_fma_f32 v{vAl}, v{vM}, s{sC}, -v{vNm}")
        e(f"    v_mov_b32 v{vM}, v{vMx}")
        e(f"    v_exp_f32 v{vAl}, v{vAl}")
        for j in range(8):
            e(f"    v_fma_f32 v{vS+j}, v{vS+j}, s{sC}, -v{vNm}")
        for j in range(8):
            e(f"    v_exp_f32 v{vS+j}, v{vS+j}")
        for i in range(32):
            e(f"    v_mul_f32 v{vO+i}, v{vAl}, v{vO+i}")
        e(f"    v_fma_f32 v{vL}, v{vL}, v{vAl}, v{vS}")
        e(f"    v_add_f32 v{vTmp}, v{vS+1}, v{vS+2}")
        e(f"    v_add_f32 v{vTmp2}, v{vS+3}, v{vS+4}")
        e(f"    v_add_f32 v{vL}, v{vL}, v{vS+5}")
        e(f"    v_add_f32 v{vTmp}, v{vTmp}, v{vS+6}")
        e(f"    v_add_f32 v{vTmp2}, v{vTmp2}, v{vS+7}")
        e(f"    v_add_f32 v{vL}, v{vL}, v{vTmp}")
        e(f"    v_add_f32 v{vL}, v{vL}, v{vTmp2}")
        for u in range(4):
            e(f"    v_cvt_pk_bf16_f32 v{vP+u}, v{vS+2*u}, v{vS+2*u+1}")
        e(f"    s_waitcnt vmcnt({wv})")
        def perms(w):
            tb = vT + (w & 1) * 8
            for h in range(2):
                for u in range(4):
                    lo = vV + b * 32 + (2 * u) * 4 + w
                    hi = vV + b * 32 + (2 * u + 1) * 4 + w
                    e(f"    v_perm_b32 v{tb+h*4+u}, v{hi}, v{lo}, s{sPL+h}")
        def pv(w):
            tb = vT + (w & 1) * 8
            for h in range(2):
                dj = 2 * w + h
                e(f"    v_mfma_f32_16x16x32_bf16 {r4(vO+dj*4)}, {r4(tb+h*4)}, {r4(vP)}, {r4(vO+dj*4)}")
        perms(0); perms(1); pv(0); perms(2); pv(1); perms(3); pv(2)
        if pre:
            loadV(b)
        else:
            e("    s_nop 1")
        pv(3)

    wfull = 8 + 16 * (R - 1)
    npre = NI - R
    nloop = npre // R
    rem = npre - nloop * R
    if nloop > 0:
        e(f"    s_mov_b32 s{sCnt}, {nloop}")
        e("L_loop:")
        for b in range(R):
            tile(b, True, wfull, wfull)
        e(f"    s_sub_u32 s{sCnt}, s{sCnt}, 1")
        e(f"    s_cmp_lg_u32 s{sCnt}, 0")
        e("    s_cbranch_scc1 L_loop")
    b = 0
    for _ in range(rem):
        tile(b, True, wfull, wfull)
        b = (b + 1) % R
    for k in range(R):
        tile(b, False, 8 + 16 * (R - 1 - k), 16 * (R - 1 - k))
        b = (b + 1) % R
    if STAMP:
        e("    s_memrealtime s[62:63]")
    xreduce(vL, "v_add_f32")
    e(f"    s_lshl_b32 s{sT0}, s{sW}, 13")
    e(f"    v_add_u32 v{vTmp}, s{sT0}, v{vVoff}          ; w*8192 + lane*16")
    e(f"    s_lshl_b32 s{sT0}, s{sW}, 9")
    e(f"    v_lshlrev_b32 v{vKoff}, 3, v{vLane}          ; lane*8")
    e(f"    v_add_u32 v{vTmp2}, s{sT0}, v{vKoff}         ; w*512 + lane*8")
    for dj in range(8):
        e(f"    ds_write_b128 v{vTmp}, {r4(vO+dj*4)} offset:{dj*1024}")
    mlbase = NW * 8192
    e(f"    v_add_u32 v{vMx}, {mlbase}, v{vTmp2}")
    e(f"    ds_write_b64 v{vMx}, v[{vM}:{vM+1}]")
    e("    s_waitcnt lgkmcnt(0)")
    e("    s_barrier")
    if NW > 4:
        e(f"    s_cmp_ge_u32 s{sW}, 4")
        e("    s_cbranch_scc1 L_end")
    vX = vV
    vML = vQ
    e(f"    s_lshl_b32 s{sT0}, s{sW}, 11")
    e(f"    v_add_u32 v{vTmp}, s{sT0}, v{vVoff}          ; w'*2048 + lane*16")
    e(f"    v_add_u32 v{vMx}, {mlbase}, v{vKoff}")
    for w in range(NW):
        e(f"    ds_read_b64 v[{vML+2*w}:{vML+2*w+1}], v{vMx} offset:{w*512}")
    for w in range(NW):
        e(f"    ds_read_b128 {r4(vX+w*8)}, v{vTmp} offset:{w*8192}")
        e(f"    ds_read_b128 {r4(vX+w*8+4)}, v{vTmp} offset:{w*8192+1024}")

    def combine(n, wait_ml, wait_all):
        e(wait_ml)
        e(f"    v_max_f32 v{vM}, v{vML}, v{vML+2}")
        for w in range(2, n):
            e(f"    v_max_f32 v{vM}, v{vM}, v{vML+2*w}")
        e(f"    v_mul_f32 v{vNm}, s{sC}, v{vM}")
        for w in range(n):
            e(f"    v_fma_f32 v{vML+2*w}, v{vML+2*w}, s{sC}, -v{vNm}")
        for w in range(n):
            e(f"    v_exp_f32 v{vML+2*w}, v{vML+2*w}")
        e("    s_nop 0")
        e(f"    v_mul_f32 v{vL}, v{vML}, v{vML+1}")
        for w in range(1, n):
            e(f"    v_fmac_f32 v{vL}, v{vML+2*w}, v{vML+2*w+1}")
        e(wait_all)
        for j in range(8):
            e(f"    v_mul_f32 v{vO+j}, v{vML}, v{vX+j}")
        for w in range(1, n):
            for j in range(8):
                e(f"    v_fmac_f32 v{vO+j}, v{vML+2*w}, v{vX+w*8+j}")
    combine(NW, f"    s_waitcnt lgkmcnt({min(2*NW,15)})", "    s_waitcnt lgkmcnt(0)")
    e(f"    s_lshl_b32 s{sT0}, s{sSp}, 14")
    e(f"    v_add_u32 v{vTmp2}, 8192, v{vTmp2}           ; 8192 + w'*512 + lane*8")
    e(f"    buffer_store_dwordx4 {r4(vO)}, v{vTmp}, {srd(sWS)}, s{sT0} offen sc1")
    e(f"    buffer_store_dwordx4 {r4(vO+4)}, v{vTmp}, {srd(sWS)}, s{sT0} offen offset:1024 sc1")
    e(f"    buffer_store_dwordx2 v[{vM}:{vM+1}], v{vTmp2}, {srd(sWS)}, s{sT0} offen sc1")
    e("    s_waitcnt vmcnt(0)")
    e("    s_barrier")
    flag = NW * 8192 + NW * 512
    e(f"    v_mov_b32 v{vS+2}, {flag}")
    e(f"    s_cmp_lg_u32 s{sW}, 0")
    e("    s_cbranch_scc1 L_wait_ticket")
    if STAMP == 2:
        e(f"    s_and_b32 s{sT1}, s{sG}, 60")
        e(f"    s_add_u32 s{sT1}, s{sT1}, 192")
        e(f"    s_and_b32 s68, s{sG}, 3")
        e(f"    s_lshl_b32 s68, s68, 3")
        e(f"    s_lshl_b32 s69, 1, s68")
        e(f"    v_mov_b32 v{vS}, s69")
    else:
        e(f"    s_lshl_b32 s{sT1}, s{sG}, 2")
        e(f"    v_mov_b32 v{vS}, 1")
    e(f"    v_mov_b32 v{vS+1}, s{sT1}")
    e("    s_mov_b64 exec, 1")
    e(f"    buffer_atomic_add v{vS}, v{vS+1}, {srd(sDBG)}, 0 offen sc0")
    e("    s_waitcnt vmcnt(0)")
    if STAMP == 2:
        e(f"    v_bfe_u32 v{vS}, v{vS}, s68, 8")
    e(f"    ds_write_b32 v{vS+2}, v{vS}")
    e("    s_mov_b64 exec, -1")
    e("    s_waitcnt lgkmcnt(0)")
    e("L_wait_ticket:")
    e("    s_barrier")
    e(f"    ds_read_b32 v{vS}, v{vS+2}")
    e("    s_waitcnt lgkmcnt(0)")
    e(f"    v_readfirstlane_b32 s{sT1}, v{vS}")
    e(f"    s_cmp_lg_u32 s{sT1}, 3")
    e("    s_cbranch_scc1 L_fin")
    for k in range(1, 4):
        e(f"    s_add_u32 s{sT1}, s{sSp}, {k}")
        e(f"    s_and_b32 s{sT1}, s{sT1}, 3")
        e(f"    s_lshl_b32 s{sA+k-1 if k < 3 else sT2}, s{sT1}, 14")
    so = [sA, sB, sT2]
    for k in range(1, 4):
        e(f"    buffer_load_dwordx2 v[{vML+2*k}:{vML+2*k+1}], v{vTmp2}, {srd(sWS)}, s{so[k-1]} offen sc1")
    for k in range(1, 4):
        e(f"    buffer_load_dwordx4 {r4(vX+k*8)}, v{vTmp}, {srd(sWS)}, s{so[k-1]} offen sc1")
        e(f"    buffer_load_dwordx4 {r4(vX+k*8+4)}, v{vTmp}, {srd(sWS)}, s{so[k-1]} offen offset:1024 sc1")
    e(f"    v_mov_b32 v{vML}, v{vM}")
    e(f"    v_mov_b32 v{vML+1}, v{vL}")
    for j in range(8):
        e(f"    v_mov_b32 v{vX+j}, v{vO+j}")
    e(f"    v_and_b32 v{vS}, 15, v{vLane}")
    e(f"    v_lshrrev_b32 v{vS+1}, 4, v{vLane}")
    e(f"    v_lshlrev_b32 v{vS}, 8, v{vS}")
    e(f"    v_lshl_add_u32 v{vS}, v{vS+1}, 6, v{vS}")
    e(f"    s_lshl_b32 s{sT1}, s{sW}, 2")
    combine(4, "    s_waitcnt vmcnt(6)", "    s_waitcnt vmcnt(0)")
    e(f"    v_rcp_f32 v{vL}, v{vL}")
    e("    s_nop 0")
    for j in range(8):
        e(f"    v_mul_f32 v{vO+j}, v{vL}, v{vO+j}")
    for r in range(4):
        e(f"    v_cvt_pk_bf16_f32 v{vP+r}, v{vO+r}, v{vO+4+r}")
    for r in range(4):
        e(f"    buffer_store_dword v{vP+r}, v{vS}, {srd(sOUT)}, s{sT1} offen offset:{r*16}")
    e("L_fin:")
    if STAMP >= 100:
        e("L_spin:")
        e("    s_memrealtime s[64:65]")
        e("    s_waitcnt lgkmcnt(0)")
        e("    s_sub_u32 s64, s64, s60")
        e(f"    s_cmp_lt_u32 s64, {STAMP}")
        e("    s_cbranch_scc1 L_spin")
    elif STAMP:
        e("    s_waitcnt vmcnt(0)")
        e("    s_memrealtime s[64:65]")
        e(f"    s_cmp_lg_u32 s{sW}, 0")
        e("    s_cbranch_scc1 L_end")
        e("    s_waitcnt lgkmcnt(0)")
        e("    s_mov_b64 exec, 1")
        e("    v_mov_b32 v20, s60")
        e("    v_mov_b32 v21, s62")
        e("    v_mov_b32 v22, s64")
        e("    s_getreg_b32 s66, hwreg(HW_REG_XCC_ID)")
        e("    v_mov_b32 v23, s66")
        e(f"    s_lshl_b32 s{sT0}, s{sSp}, 14")
        e(f"    v_mov_b32 v{vTmp}, 16320")
        e(f"    buffer_store_dwordx4 v[20:23], v{vTmp}, {srd(sWS)}, s{sT0} offen")
        if STAMP == 2:
            e("    v_not_b32 v24, v20")
            e("    v_not_b32 v25, v21")
            e(f"    v_mov_b32 v{vTmp}, 0")
            for i, r in enumerate([24, 20, 25, 21, 22]):
                e(f"    buffer_atomic_umax v{r}, v{vTmp}, {srd(sDBG)}, 0 offen offset:{i*4}")
    e("L_end:")
    e("    s_endpgm")
    e('.section .rodata,"a"')
    e(".p2align 6")
    e(f".amdhsa_kernel {NAME}_kernel")
    e(f"  .amdhsa_next_free_vgpr {total}")
    e("  .amdhsa_next_free_sgpr 72")
    e(f"  .amdhsa_accum_offset {accum}")
    e("  .amdhsa_group_segment_fixed_size 0")
    e("  .amdhsa_kernarg_size 48")
    e("  .amdhsa_user_sgpr_count 2")
    e("  .amdhsa_user_sgpr_kernarg_segment_ptr 1")
    e("  .amdhsa_system_sgpr_workgroup_id_x 1")
    e(".end_amdhsa_kernel")
    return "\n".join(L) + "\n"

if __name__ == "__main__":
    out = sys.argv[1]
    kw = {}
    for a in sys.argv[2:]:
        k, v = a.split("=")
        kw[k] = v.replace("_", " ") if k.startswith("POL") else int(v)
    open(out, "w").write(gen(**kw))
```

```python
import sys, math, struct

NAME = "standalone__gqa_softmax__sampling"
HEADER = """; Kernarg layout for this problem (48 bytes, ptrs only, base s[0:1]):
"""

def f2u(x):
    return struct.unpack("<I", struct.pack("<f", x))[0]

def gen(NW=4, R=2, POLK="nt", POLV="nt", ROT=0, BLOCKED=0, LDS_MIN=0, WGMAP=0, STAMP=0, XM=0, XN=8, KLIN=0, GI=1):
    L = []
    e = L.append
    NI = 64 // NW
    lds = max(NW * 8192 + NW * 512 + 64, LDS_MIN)
    KA = (R > 2)
    vLane, vKoff, vVoff, vTmp, vTmp2, vM, vL, vMx, vAl, vNm = 1, 2, 3, 4, 5, 6, 7, 8, 9, 10
    vS = 12
    vP = 20
    vQ = 24
    vO = 40
    vT = 72
    vV = 88
    nv = vV + R * 32
    if KA:
        kreg = lambda b, t, s: f"a[{b*32+t*16+s*4}:{b*32+t*16+s*4+3}]"
        accum = (nv + 3) // 4 * 4
        total = accum + R * 32
    else:
        vK = nv
        nv += R * 32
        kreg = lambda b, t, s: f"v[{vK+b*32+t*16+s*4}:{vK+b*32+t*16+s*4+3}]"
        accum = (nv + 3) // 4 * 4
        total = nv
    vreg = lambda b, j: f"v[{vV+b*32+j*4}:{vV+b*32+j*4+3}]"
    r4 = lambda x: f"v[{x}:{x+3}]"
    sK, sV, sQ, sWS, sOUT, sDBG = 16, 20, 24, 28, 32, 36
    sW, sG, sSp, sCnt, sA, sB, sC, sPL, sPH, sIt, sT0, sT1, sT2, sLin = 40, 41, 42, 43, 44, 45, 46, 47, 48, 49, 50, 51, 52, 53
    srd = lambda x: f"s[{x}:{x+3}]"

    e(HEADER + f"; @launch grid=(256,1,1) block=({64*NW},1,1) lds={lds}")
    e('.amdgcn_target "amdgcn-amd-amdhsa--gfx950"')
    e(".text")
    e(f".globl {NAME}_kernel")
    e(".p2align 8")
    e(f".type {NAME}_kernel,@function")
    e(f"{NAME}_kernel:")
    e("    s_cmp_ge_u32 s2, 256")
    e("    s_cbranch_scc1 L_end")
    e("    s_load_dwordx4 s[4:7], s[0:1], 0")
    e("    s_load_dwordx4 s[8:11], s[0:1], 16")
    e("    s_load_dwordx4 s[12:15], s[0:1], 32")
    if STAMP:
        e("    s_memrealtime s[60:61]")
    e(f"    v_lshrrev_b32 v{vTmp}, 6, v0")
    e(f"    v_and_b32 v{vLane}, 63, v0")
    e(f"    v_readfirstlane_b32 s{sW}, v{vTmp}")
    if WGMAP == 0:
        e(f"    s_lshr_b32 s{sG}, s2, 2")
        e(f"    s_and_b32 s{sSp}, s2, 3")
        e(f"    s_mov_b32 s{sLin}, s2")
    else:
        e(f"    s_and_b32 s{sG}, s2, 63")
        e(f"    s_lshr_b32 s{sSp}, s2, 6")
        e(f"    s_lshl_b32 s{sLin}, s{sG}, 2")
        e(f"    s_or_b32 s{sLin}, s{sLin}, s{sSp}")
    e(f"    v_lshlrev_b32 v{vVoff}, 4, v{vLane}            ; V: lane*16")
    e(f"    v_lshrrev_b32 v{vTmp}, 4, v{vLane}             ; g")
    e(f"    v_lshlrev_b32 v{vTmp}, 4, v{vTmp}              ; g*16")
    e(f"    v_and_b32 v{vTmp2}, 3, v{vLane}")
    e(f"    v_lshl_add_u32 v{vKoff}, v{vTmp2}, 10, v{vTmp}  ; (i&3)*1024 + g*16")
    e(f"    v_bfe_u32 v{vTmp2}, v{vLane}, 2, 2")
    e(f"    v_lshl_add_u32 v{vKoff}, v{vTmp2}, 8, v{vKoff}  ; + (i>>2)*256")
    e(f"    v_and_b32 v{vTmp2}, 15, v{vLane}")
    e(f"    v_lshl_add_u32 v{vTmp}, v{vTmp2}, 8, v{vTmp}    ; Q: i*256 + g*16")
    e(f"    s_and_b32 s{sT0}, s{sLin}, {256-GI}")
    e(f"    s_lshl_b32 s{sT0}, s{sT0}, 19")
    e(f"    s_lshl_b32 s{sT1}, s{sG}, 12")
    e(f"    s_mov_b32 s{sK+2}, {0x80000*GI}")
    e(f"    s_mov_b32 s{sK+3}, 0x20000")
    e(f"    s_mov_b32 s{sV+2}, {0x80000*GI}")
    e(f"    s_mov_b32 s{sV+3}, 0x20000")
    e(f"    s_mov_b32 s{sQ+2}, 0x1000")
    e(f"    s_mov_b32 s{sQ+3}, 0x20000")
    if ROT:
        e(f"    s_mul_i32 s{sIt}, s2, {ROT}")
        e(f"    s_and_b32 s{sIt}, s{sIt}, {NI-1}")
    else:
        e(f"    s_mov_b32 s{sIt}, 0")
    if BLOCKED:
        e(f"    s_mul_i32 s{sT2}, s{sW}, {NI*8192}")
        step_sh = 13
    else:
        e(f"    s_lshl_b32 s{sT2}, s{sW}, 13")
        step_sh = 13 + int(math.log2(NW*GI))
        if GI > 1:
            e(f"    s_and_b32 s{sCnt}, s{sLin}, {GI-1}")
            e(f"    s_mul_i32 s{sCnt}, s{sCnt}, {8192*NW}")
            e(f"    s_add_u32 s{sT2}, s{sT2}, s{sCnt}")

    def next_off():
        e(f"    s_lshl_b32 s{sA}, s{sIt}, {step_sh}")
        e(f"    s_add_u32 s{sA}, s{sA}, s{sT2}")
        e(f"    s_add_u32 s{sB}, s{sA}, 4096")
        e(f"    s_add_u32 s{sIt}, s{sIt}, 1")
        if ROT:
            e(f"    s_and_b32 s{sIt}, s{sIt}, {NI-1}")
    def loadK(b):
        for t in range(2):
            for s in range(4):
                e(f"    buffer_load_dwordx4 {kreg(b,t,s)}, v{vKoff}, {srd(sK)}, s{sA+t} offen offset:{s*(1024 if KLIN else 64)} {POLK}")
    def loadV(b):
        for t in range(2):
            for r in range(4):
                e(f"    buffer_load_dwordx4 {vreg(b,t*4+r)}, v{vVoff}, {srd(sV)}, s{sA+t} offen offset:{r*1024} {POLV}")

    next_off()
    if KLIN:
        e(f"    v_mov_b32 v{vKoff}, v{vVoff}")
    e("    s_waitcnt lgkmcnt(0)")
    e(f"    s_add_u32 s{sK}, s6, s{sT0}")
    e(f"    s_addc_u32 s{sK+1}, s7, 0")
    e(f"    s_add_u32 s{sV}, s8, s{sT0}")
    e(f"    s_addc_u32 s{sV+1}, s9, 0")
    e(f"    s_add_u32 s{sQ}, s4, s{sT1}")
    e(f"    s_addc_u32 s{sQ+1}, s5, 0")
    for s in range(4):
        e(f"    buffer_load_dwordx4 {r4(vQ+s*4)}, v{vTmp}, {srd(sQ)}, 0 offen offset:{s*64}")
    for b in range(R):
        if b:
            next_off()
        loadK(b)
        loadV(b)
    e(f"    s_add_u32 s{sOUT}, s10, s{sT1}")
    e(f"    s_addc_u32 s{sOUT+1}, s11, 0")
    e(f"    s_mov_b32 s{sOUT+2}, 0x1000")
    e(f"    s_mov_b32 s{sOUT+3}, 0x20000")
    e(f"    s_lshl_b32 s{sT0}, s{sG}, 16")
    e(f"    s_add_u32 s{sWS}, s14, s{sT0}")
    e(f"    s_addc_u32 s{sWS+1}, s15, 0")
    e(f"    s_mov_b32 s{sWS+2}, 0x10000")
    e(f"    s_mov_b32 s{sWS+3}, 0x20000")
    e(f"    s_mov_b32 s{sDBG}, s12")
    e(f"    s_mov_b32 s{sDBG+1}, s13")
    e(f"    s_mov_b32 s{sDBG+2}, 0x100")
    e(f"    s_mov_b32 s{sDBG+3}, 0x20000")
    c = (128 ** -0.5) * math.log2(math.e)
    e(f"    s_mov_b32 s{sC}, {hex(f2u(c))}      ; D^-0.5 * log2(e)")
    e(f"    s_mov_b32 s{sPL}, 0x05040100")
    e(f"    s_mov_b32 s{sPH}, 0x07060302")
    e(f"    v_mov_b32 v{vM}, 0xff800000")
    e(f"    v_mov_b32 v{vL}, 0")
    for i in range(32):
        e(f"    v_mov_b32 v{vO+i}, 0")

    def xreduce(reg, op):
        e(f"    v_mov_b32 v{vTmp}, v{reg}")
        e("    s_nop 1")
        e(f"    v_permlane32_swap_b32 v{vTmp}, v{reg}")
        e("    s_nop 1")
        e(f"    {op} v{reg}, v{vTmp}, v{reg}")
        e(f"    v_mov_b32 v{vTmp}, v{reg}")
        e("    s_nop 1")
        e(f"    v_permlane16_swap_b32 v{vTmp}, v{reg}")
        e("    s_nop 1")
        e(f"    {op} v{reg}, v{vTmp}, v{reg}")

    def tile(b, pre, wk, wv):
        e(f"    s_waitcnt vmcnt({wk})")
        for s in range(4):
            for t in range(2):
                cin = "0" if s == 0 else r4(vS + t * 4)
                e(f"    v_mfma_f32_16x16x32_bf16 {r4(vS+t*4)}, {kreg(b,t,s)}, {r4(vQ+s*4)}, {cin}")
        if pre:
            next_off()
            loadK(b)
        else:
            e("    s_nop 7")
        e(f"    v_max3_f32 v{vMx}, v{vS}, v{vS+1}, v{vS+2}")
        e(f"    v_max3_f32 v{vMx}, v{vMx}, v{vS+3}, v{vS+4}")
        e(f"    v_max3_f32 v{vMx}, v{vMx}, v{vS+5}, v{vS+6}")
        e(f"    v_max3_f32 v{vMx}, v{vMx}, v{vS+7}, v{vM}")
        xreduce(vMx, "v_max_f32")
        e(f"    v_mul_f32 v{vNm}, s{sC}, v{vMx}")
        e(f"    v_fma_f32 v{vAl}, v{vM}, s{sC}, -v{vNm}")
        e(f"    v_mov_b32 v{vM}, v{vMx}")
        e(f"    v_exp_f32 v{vAl}, v{vAl}")
        for j in range(8):
            e(f"    v_fma_f32 v{vS+j}, v{vS+j}, s{sC}, -v{vNm}")
        for j in range(8):
            e(f"    v_exp_f32 v{vS+j}, v{vS+j}")
        for i in range(32):
            e(f"    v_mul_f32 v{vO+i}, v{vAl}, v{vO+i}")
        e(f"    v_fma_f32 v{vL}, v{vL}, v{vAl}, v{vS}")
        e(f"    v_add_f32 v{vTmp}, v{vS+1}, v{vS+2}")
        e(f"    v_add_f32 v{vTmp2}, v{vS+3}, v{vS+4}")
        e(f"    v_add_f32 v{vL}, v{vL}, v{vS+5}")
        e(f"    v_add_f32 v{vTmp}, v{vTmp}, v{vS+6}")
        e(f"    v_add_f32 v{vTmp2}, v{vTmp2}, v{vS+7}")
        e(f"    v_add_f32 v{vL}, v{vL}, v{vTmp}")
        e(f"    v_add_f32 v{vL}, v{vL}, v{vTmp2}")
        for u in range(4):
            e(f"    v_cvt_pk_bf16_f32 v{vP+u}, v{vS+2*u}, v{vS+2*u+1}")
        e(f"    s_waitcnt vmcnt({wv})")
        def perms(w):
            tb = vT + (w & 1) * 8
            for h in range(2):
                for u in range(4):
                    lo = vV + b * 32 + (2 * u) * 4 + w
                    hi = vV + b * 32 + (2 * u + 1) * 4 + w
                    e(f"    v_perm_b32 v{tb+h*4+u}, v{hi}, v{lo}, s{sPL+h}")
        def pv(w):
            tb = vT + (w & 1) * 8
            for h in range(2):
                dj = 2 * w + h
                e(f"    v_mfma_f32_16x16x32_bf16 {r4(vO+dj*4)}, {r4(tb+h*4)}, {r4(vP)}, {r4(vO+dj*4)}")
        perms(0); perms(1); pv(0); perms(2); pv(1); perms(3); pv(2)
        if pre:
            loadV(b)
        else:
            e("    s_nop 1")
        pv(3)

    wfull = 8 + 16 * (R - 1)
    npre = NI - R
    nloop = npre // R
    rem = npre - nloop * R
    if XM:
        e(f"    s_and_b32 s{sCnt}, s2, {XM}")
        e(f"    s_cmp_ge_u32 s{sCnt}, {XN}")
        e(f"    s_cbranch_scc1 L_skip")
    if nloop > 0:
        e(f"    s_mov_b32 s{sCnt}, {nloop}")
        e("L_loop:")
        for b in range(R):
            tile(b, True, wfull, wfull)
        e(f"    s_sub_u32 s{sCnt}, s{sCnt}, 1")
        e(f"    s_cmp_lg_u32 s{sCnt}, 0")
        e("    s_cbranch_scc1 L_loop")
    e("L_skip:")
    b = 0
    for _ in range(rem):
        tile(b, True, wfull, wfull)
        b = (b + 1) % R
    for k in range(R):
        tile(b, False, 8 + 16 * (R - 1 - k), 16 * (R - 1 - k))
        b = (b + 1) % R
    if STAMP:
        e("    s_memrealtime s[62:63]")
    xreduce(vL, "v_add_f32")
    e(f"    s_lshl_b32 s{sT0}, s{sW}, 13")
    e(f"    v_add_u32 v{vTmp}, s{sT0}, v{vVoff}          ; w*8192 + lane*16")
    e(f"    s_lshl_b32 s{sT0}, s{sW}, 9")
    e(f"    v_lshlrev_b32 v{vKoff}, 3, v{vLane}          ; lane*8")
    e(f"    v_add_u32 v{vTmp2}, s{sT0}, v{vKoff}         ; w*512 + lane*8")
    for dj in range(8):
        e(f"    ds_write_b128 v{vTmp}, {r4(vO+dj*4)} offset:{dj*1024}")
    mlbase = NW * 8192
    e(f"    v_add_u32 v{vMx}, {mlbase}, v{vTmp2}")
    e(f"    ds_write_b64 v{vMx}, v[{vM}:{vM+1}]")
    e("    s_waitcnt lgkmcnt(0)")
    e("    s_barrier")
    if NW > 4:
        e(f"    s_cmp_ge_u32 s{sW}, 4")
        e("    s_cbranch_scc1 L_end")
    vX = vV
    vML = vQ
    e(f"    s_lshl_b32 s{sT0}, s{sW}, 11")
    e(f"    v_add_u32 v{vTmp}, s{sT0}, v{vVoff}          ; w'*2048 + lane*16")
    e(f"    v_add_u32 v{vMx}, {mlbase}, v{vKoff}")
    for w in range(NW):
        e(f"    ds_read_b64 v[{vML+2*w}:{vML+2*w+1}], v{vMx} offset:{w*512}")
    for w in range(NW):
        e(f"    ds_read_b128 {r4(vX+w*8)}, v{vTmp} offset:{w*8192}")
        e(f"    ds_read_b128 {r4(vX+w*8+4)}, v{vTmp} offset:{w*8192+1024}")

    def combine(n, wait_ml, wait_all):
        e(wait_ml)
        e(f"    v_max_f32 v{vM}, v{vML}, v{vML+2}")
        for w in range(2, n):
            e(f"    v_max_f32 v{vM}, v{vM}, v{vML+2*w}")
        e(f"    v_mul_f32 v{vNm}, s{sC}, v{vM}")
        for w in range(n):
            e(f"    v_fma_f32 v{vML+2*w}, v{vML+2*w}, s{sC}, -v{vNm}")
        for w in range(n):
            e(f"    v_exp_f32 v{vML+2*w}, v{vML+2*w}")
        e("    s_nop 0")
        e(f"    v_mul_f32 v{vL}, v{vML}, v{vML+1}")
        for w in range(1, n):
            e(f"    v_fmac_f32 v{vL}, v{vML+2*w}, v{vML+2*w+1}")
        e(wait_all)
        for j in range(8):
            e(f"    v_mul_f32 v{vO+j}, v{vML}, v{vX+j}")
        for w in range(1, n):
            for j in range(8):
                e(f"    v_fmac_f32 v{vO+j}, v{vML+2*w}, v{vX+w*8+j}")
    combine(NW, f"    s_waitcnt lgkmcnt({min(2*NW,15)})", "    s_waitcnt lgkmcnt(0)")
    e(f"    s_lshl_b32 s{sT0}, s{sSp}, 14")
    e(f"    v_add_u32 v{vTmp2}, 8192, v{vTmp2}           ; 8192 + w'*512 + lane*8")
    e(f"    buffer_store_dwordx4 {r4(vO)}, v{vTmp}, {srd(sWS)}, s{sT0} offen sc1")
    e(f"    buffer_store_dwordx4 {r4(vO+4)}, v{vTmp}, {srd(sWS)}, s{sT0} offen offset:1024 sc1")
    e(f"    buffer_store_dwordx2 v[{vM}:{vM+1}], v{vTmp2}, {srd(sWS)}, s{sT0} offen sc1")
    e("    s_waitcnt vmcnt(0)")
    e("    s_barrier")
    flag = NW * 8192 + NW * 512
    e(f"    v_mov_b32 v{vS+2}, {flag}")
    e(f"    s_cmp_lg_u32 s{sW}, 0")
    e("    s_cbranch_scc1 L_wait_ticket")
    if STAMP == 2:
        e(f"    s_and_b32 s{sT1}, s{sG}, 60")
        e(f"    s_add_u32 s{sT1}, s{sT1}, 192")
        e(f"    s_and_b32 s68, s{sG}, 3")
        e(f"    s_lshl_b32 s68, s68, 3")
        e(f"    s_lshl_b32 s69, 1, s68")
        e(f"    v_mov_b32 v{vS}, s69")
    else:
        e(f"    s_lshl_b32 s{sT1}, s{sG}, 2")
        e(f"    v_mov_b32 v{vS}, 1")
    e(f"    v_mov_b32 v{vS+1}, s{sT1}")
    e("    s_mov_b64 exec, 1")
    e(f"    buffer_atomic_add v{vS}, v{vS+1}, {srd(sDBG)}, 0 offen sc0")
    e("    s_waitcnt vmcnt(0)")
    if STAMP == 2:
        e(f"    v_bfe_u32 v{vS}, v{vS}, s68, 8")
    e(f"    ds_write_b32 v{vS+2}, v{vS}")
    e("    s_mov_b64 exec, -1")
    e("    s_waitcnt lgkmcnt(0)")
    e("L_wait_ticket:")
    e("    s_barrier")
    e(f"    ds_read_b32 v{vS}, v{vS+2}")
    e("    s_waitcnt lgkmcnt(0)")
    e(f"    v_readfirstlane_b32 s{sT1}, v{vS}")
    e(f"    s_cmp_lg_u32 s{sT1}, 3")
    e("    s_cbranch_scc1 L_fin")
    for k in range(1, 4):
        e(f"    s_add_u32 s{sT1}, s{sSp}, {k}")
        e(f"    s_and_b32 s{sT1}, s{sT1}, 3")
        e(f"    s_lshl_b32 s{sA+k-1 if k < 3 else sT2}, s{sT1}, 14")
    so = [sA, sB, sT2]
    for k in range(1, 4):
        e(f"    buffer_load_dwordx2 v[{vML+2*k}:{vML+2*k+1}], v{vTmp2}, {srd(sWS)}, s{so[k-1]} offen sc1")
    for k in range(1, 4):
        e(f"    buffer_load_dwordx4 {r4(vX+k*8)}, v{vTmp}, {srd(sWS)}, s{so[k-1]} offen sc1")
        e(f"    buffer_load_dwordx4 {r4(vX+k*8+4)}, v{vTmp}, {srd(sWS)}, s{so[k-1]} offen offset:1024 sc1")
    e(f"    v_mov_b32 v{vML}, v{vM}")
    e(f"    v_mov_b32 v{vML+1}, v{vL}")
    for j in range(8):
        e(f"    v_mov_b32 v{vX+j}, v{vO+j}")
    e(f"    v_and_b32 v{vS}, 15, v{vLane}")
    e(f"    v_lshrrev_b32 v{vS+1}, 4, v{vLane}")
    e(f"    v_lshlrev_b32 v{vS}, 8, v{vS}")
    e(f"    v_lshl_add_u32 v{vS}, v{vS+1}, 6, v{vS}")
    e(f"    s_lshl_b32 s{sT1}, s{sW}, 2")
    combine(4, "    s_waitcnt vmcnt(6)", "    s_waitcnt vmcnt(0)")
    e(f"    v_rcp_f32 v{vL}, v{vL}")
    e("    s_nop 0")
    for j in range(8):
        e(f"    v_mul_f32 v{vO+j}, v{vL}, v{vO+j}")
    for r in range(4):
        e(f"    v_cvt_pk_bf16_f32 v{vP+r}, v{vO+r}, v{vO+4+r}")
    for r in range(4):
        e(f"    buffer_store_dword v{vP+r}, v{vS}, {srd(sOUT)}, s{sT1} offen offset:{r*16}")
    e("L_fin:")
    if STAMP >= 100:
        e("L_spin:")
        e("    s_memrealtime s[64:65]")
        e("    s_waitcnt lgkmcnt(0)")
        e("    s_sub_u32 s64, s64, s60")
        e(f"    s_cmp_lt_u32 s64, {STAMP}")
        e("    s_cbranch_scc1 L_spin")
    elif STAMP:
        e("    s_waitcnt vmcnt(0)")
        e("    s_memrealtime s[64:65]")
        e(f"    s_cmp_lg_u32 s{sW}, 0")
        e("    s_cbranch_scc1 L_end")
        e("    s_waitcnt lgkmcnt(0)")
        e("    s_mov_b64 exec, 1")
        e("    v_mov_b32 v20, s60")
        e("    v_mov_b32 v21, s62")
        e("    v_mov_b32 v22, s64")
        e("    s_getreg_b32 s66, hwreg(HW_REG_XCC_ID)")
        e("    v_mov_b32 v23, s66")
        e(f"    s_lshl_b32 s{sT0}, s{sSp}, 14")
        e(f"    v_mov_b32 v{vTmp}, 16320")
        e(f"    buffer_store_dwordx4 v[20:23], v{vTmp}, {srd(sWS)}, s{sT0} offen")
        if STAMP == 2:
            e("    v_not_b32 v24, v20")
            e("    v_not_b32 v25, v21")
            e(f"    v_mov_b32 v{vTmp}, 0")
            for i, r in enumerate([24, 20, 25, 21, 22]):
                e(f"    buffer_atomic_umax v{r}, v{vTmp}, {srd(sDBG)}, 0 offen offset:{i*4}")
    e("L_end:")
    e("    s_endpgm")
    e('.section .rodata,"a"')
    e(".p2align 6")
    e(f".amdhsa_kernel {NAME}_kernel")
    e(f"  .amdhsa_next_free_vgpr {total}")
    e("  .amdhsa_next_free_sgpr 72")
    e(f"  .amdhsa_accum_offset {accum}")
    e("  .amdhsa_group_segment_fixed_size 0")
    e("  .amdhsa_kernarg_size 48")
    e("  .amdhsa_user_sgpr_count 2")
    e("  .amdhsa_user_sgpr_kernarg_segment_ptr 1")
    e("  .amdhsa_system_sgpr_workgroup_id_x 1")
    e(".end_amdhsa_kernel")
    return "\n".join(L) + "\n"

if __name__ == "__main__":
    out = sys.argv[1]
    kw = {}
    for a in sys.argv[2:]:
        k, v = a.split("=")
        kw[k] = v.replace("_", " ") if k.startswith("POL") else int(v)
    open(out, "w").write(gen(**kw))
```

```python
import sys, math
from gen import HEADER, NAME, f2u

def gen(C=16, N=20, GI=4, WGMAP=1, POL="nt", STAMP=0, TK=2, PRIO=1, LW=0, NOSW=0, NOC=0, W=1, ROT=0, NOSENT=0, NOTK=0, OPOL="", LATE=4, PRE=1, N2=0, SPOL="sc1", LPOL="sc1", NOST=0, NOCHK=0, NOGA=0):
    L = []
    e = L.append
    NR = 512 // C
    NT = C // 4
    SLOT = C * 1024
    assert C == 16 and C < N <= 2 * C
    PB = 8 * SLOT
    MB = PB + 8192
    FLAG = MB + 1024
    lds = FLAG + 64
    srd = lambda x: f"s[{x}:{x+3}]"
    r4 = lambda x: f"v[{x}:{x+3}]"
    r2 = lambda x: f"v[{x}:{x+1}]"
    sK, sV, sQ, sWS, sOUT = 16, 20, 24, 28, 32
    sW, sG, sSp, sCnt, sOff, sO2, sC, sLds, sT0, sT1, sT2, sLin, sTk = 40, 41, 42, 43, 44, 45, 46, 47, 48, 49, 50, 51, 52
    e(HEADER + f"; @launch grid=(256,1,1) block=(320,1,1) lds={lds}")
    e('.amdgcn_target "amdgcn-amd-amdhsa--gfx950"')
    e(".text")
    e(f".globl {NAME}_kernel")
    e(".p2align 8")
    e(f".type {NAME}_kernel,@function")
    e(f"{NAME}_kernel:")
    e("    s_cmp_ge_u32 s2, 256")
    e("    s_cbranch_scc1 L_end")
    e("    s_load_dwordx4 s[4:7], s[0:1], 0")
    e("    s_load_dwordx4 s[8:11], s[0:1], 16")
    e("    s_load_dwordx4 s[12:15], s[0:1], 32")
    if STAMP:
        e("    s_memrealtime s[60:61]")
    e("    v_lshrrev_b32 v2, 6, v0")
    e("    v_and_b32 v1, 63, v0                 ; lane")
    e(f"    v_readfirstlane_b32 s{sW}, v2")
    if WGMAP == 0:
        e(f"    s_lshr_b32 s{sG}, s2, 2")
        e(f"    s_and_b32 s{sSp}, s2, 3")
    elif WGMAP == 1:
        e(f"    s_and_b32 s{sG}, s2, 63")
        e(f"    s_lshr_b32 s{sSp}, s2, 6")
    elif WGMAP == 2:
        e(f"    s_and_b32 s{sG}, s2, 7")
        e(f"    s_lshr_b32 s{sT0}, s2, 5")
        e(f"    s_lshl_b32 s{sG}, s{sG}, 3")
        e(f"    s_or_b32 s{sG}, s{sG}, s{sT0}")
        e(f"    s_bfe_u32 s{sSp}, s2, 0x20003")
    elif WGMAP == 3:
        e(f"    s_lshr_b32 s{sT0}, s2, 1")
        e(f"    s_xor_b32 s{sT0}, s{sT0}, s2")
        e(f"    s_and_b32 s{sT0}, s{sT0}, 1")
        e(f"    s_lshr_b32 s{sG}, s2, 3")
        e(f"    s_lshl_b32 s{sG}, s{sG}, 1")
        e(f"    s_or_b32 s{sG}, s{sG}, s{sT0}")
        e(f"    s_bfe_u32 s{sSp}, s2, 0x20001")
    e("    v_lshrrev_b32 v2, 4, v1              ; g = lane>>4")
    e("    v_and_b32 v3, 15, v1                 ; i = lane&15")
    e(f"    s_cmp_lg_u32 s{sW}, {LW}")
    e("    s_cbranch_scc1 L_consumer")
    vKo, vVo = 4, 8
    e("    v_xor_b32 v10, v3, v2")
    e("    v_lshlrev_b32 v10, 4, v10")
    e(f"    v_lshl_add_u32 v{vKo}, v2, 8, v10")
    e(f"    s_lshl_b32 s{sT0}, s{sG}, 21")
    e(f"    s_mov_b32 s{sK+2}, 0x200000")
    e(f"    s_mov_b32 s{sK+3}, 0x20000")
    if GI == 4:
        e(f"    s_mul_i32 s{sOff}, s{sSp}, {SLOT}")
        rstep = 4 * SLOT
    else:
        e(f"    s_lshl_b32 s{sOff}, s{sSp}, 19")
        rstep = SLOT
    for j in range(1, 4):
        e(f"    v_xor_b32 v{vKo+j}, {j*64}, v{vKo}")
    e("    v_lshlrev_b32 v10, 1, v2")
    e("    v_xor_b32 v10, v3, v10")
    e("    v_lshlrev_b32 v10, 4, v10")
    e(f"    v_lshl_add_u32 v{vVo}, v2, 8, v10")
    e(f"    v_xor_b32 v{vVo+1}, 128, v{vVo}")
    e(f"    s_mov_b32 s{sV+2}, 0x200000")
    e(f"    s_mov_b32 s{sV+3}, 0x20000")
    if ROT:
        e(f"    s_mul_i32 s{sT1}, s{sG}, {ROT}")
        e(f"    s_and_b32 s{sT1}, s{sT1}, {NR-1}")
        e(f"    s_mul_i32 s{sT1}, s{sT1}, {rstep}")
        e(f"    s_add_u32 s{sOff}, s{sOff}, s{sT1}")
    e(f"    s_mul_i32 s{sLin}, s{sG}, {W}")
    e(f"    s_lshr_b32 s{sLin}, s{sLin}, 6")
    e(f"    s_sub_u32 s{sLin}, {NR-TK}, s{sLin}")
    e(f"    s_mov_b32 s{sLds}, 0")
    if NOSW:
        for j in range(6):
            e(f"    v_lshlrev_b32 v{vKo+j}, 4, v1")
    if PRIO:
        e(f"    s_setprio {PRIO}")
    e("    s_waitcnt lgkmcnt(0)")
    e(f"    s_add_u32 s{sK}, s6, s{sT0}")
    e(f"    s_addc_u32 s{sK+1}, s7, 0")
    e(f"    s_add_u32 s{sV}, s8, s{sT0}")
    e(f"    s_addc_u32 s{sV+1}, s9, 0")
    def lstamp(idx):
        if STAMP == 2:
            e("    s_memrealtime s[62:63]")
            e("    s_waitcnt lgkmcnt(0)")
            e(f"    v_writelane_b32 v20, s62, {idx}")
    if STAMP == 2:
        e("    v_mov_b32 v20, 0")
        e("    v_writelane_b32 v20, s60, 0")
        e("    s_mov_b32 s67, 4")
    lstamp(1)
    sOff0 = 54
    e(f"    s_mov_b32 s{sOff0}, s{sOff}")
    def ticket():
        e(f"    s_lshl_b32 s{sT0}, s{sG}, 2")
        e(f"    s_add_u32 s12, s12, s{sT0}")
        e(f"    s_addc_u32 s13, s13, 0")
        e(f"    s_mov_b32 s{sTk}, 1")
        if NOTK:
            e(f"    s_mov_b32 s{sTk}, s{sSp}")
        else:
            e(f"    s_atomic_add s{sTk}, s[12:13], 0 glc")
    for st in range(2):
        n = N if st == 0 else (N2 or N)
        e(f"    s_mov_b32 s{sCnt}, 0")
        e(f"L_load{st}:")
        for j in range(C):
            if j % 4 == 0:
                e(f"    s_add_u32 m0, s{sLds}, {j*1024}")
                e(f"    s_add_u32 s{sO2}, s{sOff}, {j*1024}")
            e(f"    s_waitcnt vmcnt({n-1})")
            if j == n - 1 - C:
                if st == 0:
                    e(f"    s_cmp_lt_u32 s{sCnt}, 2")
                    e("    s_cbranch_scc1 L_nobar")
                e("    s_barrier")
                if st == 0:
                    e("L_nobar:")
            vo = vKo + (j % 4) if st == 0 else vVo + (j % 2)
            e(f"    buffer_load_dwordx4 v{vo}, {srd(sK if st == 0 else sV)}, s{sO2} offen offset:{(j%4)*1024} {POL} lds")
        e(f"    s_add_u32 s{sLds}, s{sLds}, {SLOT}")
        e(f"    s_and_b32 s{sLds}, s{sLds}, {PB-1}")
        e(f"    s_add_u32 s{sOff}, s{sOff}, {rstep}")
        if ROT:
            e(f"    s_and_b32 s{sOff}, s{sOff}, 0x1fffff")
        if st == 1:
            e(f"    s_cmp_lg_u32 s{sCnt}, s{sLin}")
            e("    s_cbranch_scc1 L_notk")
            ticket()
            e("L_notk:")
        e(f"    s_add_u32 s{sCnt}, s{sCnt}, 1")
        e(f"    s_cmp_lt_u32 s{sCnt}, {NR}")
        e(f"    s_cbranch_scc1 L_load{st}")
        if st == 0:
            e(f"    s_mov_b32 s{sOff}, s{sOff0}")
    e(f"    v_mov_b32 v11, {FLAG}")
    e("    s_waitcnt lgkmcnt(0)")
    e(f"    v_mov_b32 v10, s{sTk}")
    e("    ds_write_b32 v11, v10")
    e(f"    s_waitcnt vmcnt({C}) lgkmcnt(0)")
    e("    s_barrier")
    e("    s_waitcnt vmcnt(0)")
    e("    s_barrier")
    if STAMP == 2:
        e("    s_mov_b32 m0, s67")
        lstamp("m0")
        e(f"    s_lshl_b32 s{sT0}, s{sG}, 16")
        e(f"    s_add_u32 s{sWS}, s14, s{sT0}")
        e(f"    s_addc_u32 s{sWS+1}, s15, 0")
        e(f"    s_mov_b32 s{sWS+2}, 0x10000")
        e(f"    s_mov_b32 s{sWS+3}, 0x20000")
        e(f"    s_lshl_b32 s{sT0}, s{sSp}, 14")
        e(f"    s_add_u32 s{sT0}, s{sT0}, 15360")
        e("    v_lshlrev_b32 v21, 2, v1")
        e(f"    buffer_store_dword v20, v21, {srd(sWS)}, s{sT0} offen")
    e("    s_endpgm")
    e("L_consumer:")
    nst = [0]
    def cstamp(idx, rnd=None):
        if STAMP != 3: return
        nst[0] += 1
        if rnd is not None:
            e(f"    s_cmp_lg_u32 s{sCnt}, {rnd}")
            e(f"    s_cbranch_scc1 L_cs{nst[0]}")
        e("    s_memrealtime s[64:65]")
        e("    s_waitcnt lgkmcnt(0)")
        e(f"    v_writelane_b32 v19, s64, {idx}")
        e(f"L_cs{nst[0]}:")
    vKA, vVA = 4, 8
    vM, vMs, vMx, vAl, vTmp, vWs, vWl, vOa = 10, 11, 12, 13, 14, 15, 16, 17
    vOne, vLa, vO, vQ = 20, 24, 28, 36
    vP = 52
    vF = vP + 24
    vS = vF + 32
    vX, vML = vS + 32, vS + 48
    vPW, vPR = 0, 3
    vAc = 18
    vTiny = 2
    sSent, sOk = 56, 57
    nv = vS + 4 * NR
    if LW == 0:
        e(f"    s_sub_u32 s{sW}, s{sW}, 1")
    e(f"    v_lshlrev_b32 v{vTmp}, 4, v2")
    e(f"    v_lshl_add_u32 v{vTmp}, v3, 8, v{vTmp}    ; Q: i*256 + g*16")
    e(f"    s_lshl_b32 s{sT1}, s{sG}, 12")
    e(f"    s_lshl_b32 s{sT0}, s{sG}, 16")
    e(f"    s_mov_b32 s{sQ+2}, 0x1000")
    e(f"    s_mov_b32 s{sQ+3}, 0x20000")
    e(f"    s_mov_b32 s{sWS+2}, 0x10000")
    e(f"    s_mov_b32 s{sWS+3}, 0x20000")
    e(f"    s_mov_b32 s{sOUT+2}, 0x1000")
    e(f"    s_mov_b32 s{sOUT+3}, 0x20000")
    e(f"    s_mul_i32 s{sT2}, s{sW}, 1536")
    e(f"    v_lshl_add_u32 v{vWs}, v1, 4, s{sT2}")
    e(f"    v_lshl_add_u32 v{vWl}, v1, 3, s{sT2}")
    e(f"    s_mov_b32 s{sSent}, 0x80008000")
    for j in range(4):
        e(f"    v_mov_b32 v{vF+j}, s{sSent}")
    e(f"    s_lshl_b32 s{sOff}, s{sSp}, 14")
    e("    s_waitcnt lgkmcnt(0)")
    e(f"    s_add_u32 s{sQ}, s4, s{sT1}")
    e(f"    s_addc_u32 s{sQ+1}, s5, 0")
    e(f"    s_add_u32 s{sWS}, s14, s{sT0}")
    e(f"    s_addc_u32 s{sWS+1}, s15, 0")
    e(f"    s_add_u32 s{sOUT}, s10, s{sT1}")
    e(f"    s_addc_u32 s{sOUT+1}, s11, 0")
    for s in range(4):
        e(f"    buffer_load_dwordx4 {r4(vQ+s*4)}, v{vTmp}, {srd(sQ)}, 0 offen offset:{s*64}")
    if NOSENT:
        e("    s_branch L_nosent")
    e(f"    buffer_store_dwordx4 {r4(vF)}, v{vWs}, {srd(sWS)}, s{sOff} offen {SPOL}")
    e(f"    buffer_store_dwordx2 {r2(vF)}, v{vWl}, {srd(sWS)}, s{sOff} offen offset:1024 {SPOL}")
    if NOSENT:
        e("L_nosent:")
    e(f"    v_xor_b32 v{vMx}, v2, v3")
    e(f"    v_lshlrev_b32 v{vMx}, 4, v{vMx}")
    e(f"    v_lshl_add_u32 v{vKA}, v3, 8, v{vMx}")
    e(f"    s_lshl_b32 s{sT2}, s{sW}, 12")
    e(f"    v_add_u32 v{vKA}, s{sT2}, v{vKA}")
    for s in range(1, 4):
        e(f"    v_xor_b32 v{vKA+s}, {s*64}, v{vKA}")
    e(f"    v_lshrrev_b32 v{vMx}, 2, v1               ; key (0..15)")
    e(f"    v_bfe_u32 v{vAl}, v1, 1, 1")
    e(f"    s_lshl_b32 s{sT2}, s{sW}, 2")
    e(f"    v_or_b32 v{vAl}, s{sT2}, v{vAl}")
    e(f"    v_and_b32 v{vM}, 7, v{vMx}")
    e(f"    v_lshlrev_b32 v{vM}, 1, v{vM}")
    e(f"    v_xor_b32 v{vAl}, v{vAl}, v{vM}")
    e(f"    v_lshlrev_b32 v{vAl}, 4, v{vAl}")
    e(f"    v_lshl_add_u32 v{vAl}, v{vMx}, 8, v{vAl}")
    e(f"    v_and_b32 v{vM}, 1, v1")
    e(f"    v_lshl_add_u32 v{vVA}, v{vM}, 3, v{vAl}")
    e(f"    v_xor_b32 v{vVA+1}, 32, v{vVA}")
    e(f"    v_lshlrev_b32 v{vOa}, 8, v3")
    e(f"    v_lshl_add_u32 v{vOa}, v2, 3, v{vOa}")
    e(f"    s_lshl_b32 s{sT2}, s{sW}, 6")
    e(f"    v_add_u32 v{vOa}, s{sT2}, v{vOa}")
    c = (128 ** -0.5) * math.log2(math.e)
    e(f"    s_mov_b32 s{sC}, {hex(f2u(c))}      ; D^-0.5 * log2(e)")
    e(f"    s_mov_b32 s{sT2}, {PB}")
    e(f"    v_lshl_add_u32 v{vPR}, v1, 4, s{sT2}")
    e(f"    s_lshr_b32 s{sT0}, s{sW}, 1")
    e(f"    s_lshl_b32 s{sT0}, s{sT0}, 10")
    e(f"    s_and_b32 s{sT1}, s{sW}, 1")
    e(f"    s_lshl_b32 s{sT1}, s{sT1}, 3")
    e(f"    s_add_u32 s{sT0}, s{sT0}, s{sT1}")
    e(f"    v_add_u32 v{vPW}, s{sT0}, v{vPR}          ; P write: + (w>>1)*1024 + (w&1)*8")
    e(f"    s_mov_b32 s{sT2}, {MB}")
    e(f"    v_lshl_add_u32 v{vAc}, v1, 4, s{sT2}")
    e(f"    v_mov_b32 v{vTiny}, 0x00800000")
    e(f"    v_mov_b32 v{vM}, 0xff800000")
    for j in range(4):
        e(f"    v_mov_b32 v{vOne+j}, 0x3f803f80")
        e(f"    v_mov_b32 v{vLa+j}, 0")
    for j in range(8):
        e(f"    v_mov_b32 v{vO+j}, 0")
    for k in range(1, 4):
        e(f"    s_add_u32 s{sT0+k-1}, s{sSp}, {k}")
        e(f"    s_and_b32 s{sT0+k-1}, s{sT0+k-1}, 3")
        e(f"    s_lshl_b32 s{sT0+k-1}, s{sT0+k-1}, 14")
    if STAMP == 3:
        e("    v_mov_b32 v19, 0")
        e("    v_writelane_b32 v19, s60, 0")
    cstamp(1)
    e(f"    s_waitcnt vmcnt({0 if NOSENT else 2})")
    cstamp(2)
    def vread(r, fb):
        for ks in range(2):
            for db in range(2):
                for tt in range(2):
                    e(f"    ds_read_b64_tr_b16 {r2(fb+ks*8+db*4+tt*2)}, v{vVA+db} offset:{(r%4)*SLOT+(2*ks+tt)*4096}")
        if r % 4 == 3:
            for db in range(2):
                e(f"    v_xor_b32 v{vVA+db}, {4*SLOT}, v{vVA+db}")
    def pvm(r, fb, ks):
        for db in range(2):
            e(f"    v_mfma_f32_16x16x32_bf16 {r4(vO+db*4)}, {r4(fb+ks*8+db*4)}, {r4(vP+(r%3)*8+ks*4)}, {r4(vO+db*4)}")
    def pread(r):
        for ks in range(2):
            e(f"    ds_read_b128 {r4(vP+(r%3)*8+ks*4)}, v{vPR} offset:{(r%4)*2048+ks*1024}")
    def lsum(r):
        for ks in range(2):
            e(f"    v_mfma_f32_16x16x32_bf16 {r4(vLa)}, {r4(vOne)}, {r4(vP+(r%3)*8+ks*4)}, {r4(vLa)}")
    def pmake(rs):
        for r in rs:
            for j in range(4):
                e(f"    v_fma_f32 v{vS+4*r+j}, v{vS+4*r+j}, s{sC}, -v{vMs}")
        for r in rs:
            for j in range(4):
                e(f"    v_exp_f32 v{vS+4*r+j}, v{vS+4*r+j}")
        e("    s_nop 0")
        for r in rs:
            for u in range(2):
                e(f"    v_cvt_pk_bf16_f32 v{vS+4*r+u}, v{vS+4*r+2*u}, v{vS+4*r+2*u+1}")
            e(f"    ds_write_b64 v{vPW}, {r2(vS+4*r)} offset:{(r%4)*2048}")
    def pv():
        vread(NR - 1, vF)
        e("    s_waitcnt lgkmcnt(4)")
        pvm(NR - 1, vF, 0)
        e("    s_waitcnt lgkmcnt(0)")
        pvm(NR - 1, vF, 1)
    def polls(guard=False):
        for k in range(3):
            if guard:
                e(f"    s_cmp_eq_u64 s[{sMiss+2*k}:{sMiss+2*k+1}], 0")
                e(f"    s_cbranch_scc1 L_have{k}")
            e(f"    buffer_load_dwordx4 {r4(vX+k*4)}, v{vWs}, {srd(sWS)}, s{sT0+k} offen {LPOL}")
            e(f"    buffer_load_dwordx2 {r2(vML+k*2)}, v{vWl}, {srd(sWS)}, s{sT0+k} offen offset:1024 {LPOL}")
            if guard:
                e(f"L_have{k}:")
    sMiss = 66
    def smax(r):
        e(f"    v_max3_f32 v{vM}, v{vS+4*r}, v{vS+4*r+1}, v{vM}")
        e(f"    v_max3_f32 v{vM}, v{vS+4*r+2}, v{vS+4*r+3}, v{vM}")
    for r in range(NR):
        if r == LATE:
            e("    s_waitcnt vmcnt(0)")
        e("    s_barrier")
        for q in range(4):
            e(f"    ds_read_b128 {r4(vF+q*4)}, v{vKA+q} offset:{(r%4)*SLOT}")
        if r % 4 == 3:
            for q in range(4):
                e(f"    v_xor_b32 v{vKA+q}, {4*SLOT}, v{vKA+q}")
        for q in range(4):
            e(f"    s_waitcnt lgkmcnt({3-q})")
            e(f"    v_mfma_f32_16x16x32_bf16 {r4(vS+4*r)}, {r4(vF+q*4)}, {r4(vQ+q*4)}, {'0' if q == 0 else r4(vS+4*r)}")
        if r:
            smax(r - 1)
    e(f"    s_lshl_b32 s{sCnt}, s{sW}, 2")
    e(f"    v_add_u32 v{vMx}, s{sCnt}, v{vAc}")
    e("    s_nop 3")
    smax(NR - 1)
    for sw in ("32", "16"):
        e(f"    v_mov_b32 v{vTmp}, v{vM}")
        e("    s_nop 1")
        e(f"    v_permlane{sw}_swap_b32 v{vTmp}, v{vM}")
        e("    s_nop 1")
        e(f"    v_max_f32 v{vM}, v{vTmp}, v{vM}")
    e(f"    ds_write_b32 v{vMx}, v{vM}")
    e("    s_waitcnt lgkmcnt(0)")
    e("    s_barrier")
    e(f"    ds_read_b128 {r4(vF)}, v{vAc}")
    e("    s_waitcnt lgkmcnt(0)")
    e(f"    v_max3_f32 v{vM}, v{vF}, v{vF+1}, v{vF+2}")
    e(f"    v_max_f32 v{vM}, v{vM}, v{vF+3}")
    e(f"    v_mul_f32 v{vMs}, s{sC}, v{vM}")
    pmake([0, 1, 2])
    e("    s_waitcnt lgkmcnt(0)")
    e("    s_barrier")
    pread(0); pread(1); pread(2)
    vread(0, vF)
    e("    s_waitcnt lgkmcnt(8)")
    lsum(0); lsum(1); lsum(2)
    e("    s_waitcnt lgkmcnt(0)")
    vread(1, vF + 16)
    pvm(0, vF, 0); pvm(0, vF, 1)
    pmake([3])
    e("    s_waitcnt lgkmcnt(0)")
    pvm(1, vF + 16, 0); pvm(1, vF + 16, 1)
    for r in range(2, NR - 1):
        if r == NR - 2:
            e(f"    v_mov_b32 v{vTmp}, {FLAG}")
        e("    s_barrier")
        if r == NR - 2:
            e(f"    ds_read_b32 v{vTmp}, v{vTmp}")
        vread(r, vF)
        pread(r + 1)
        wr = r + 2 < NR
        if wr:
            pmake([r + 2])
        e(f"    s_waitcnt lgkmcnt({6 + wr})")
        pvm(r, vF, 0)
        e(f"    s_waitcnt lgkmcnt({2 + wr})")
        pvm(r, vF, 1)
        e("    s_waitcnt lgkmcnt(0)")
        lsum(r + 1)
    e(f"    v_readfirstlane_b32 s{sTk}, v{vTmp}")
    e("    s_nop 6")
    e(f"    v_log_f32 v{vAl}, v{vLa}")
    e(f"    v_rcp_f32 v{vLa}, v{vLa}                 ; 1/l")
    e(f"    s_add_u32 s{sOk}, s{sSent}, 0x8000")
    e(f"    v_add_f32 v{vAl}, v{vMs}, v{vAl}")
    cstamp(12)
    e(f"    s_cmp_eq_u32 s{sTk}, {7 if NOGA else 3}")
    e("    s_cbranch_scc1 L_gather")
    e("    s_barrier")
    cstamp(13)
    if STAMP:
        e("    s_memrealtime s[62:63]")
        e("    s_waitcnt lgkmcnt(0)")
    pv()
    cstamp(14)
    if NOST:
        e("    s_branch L_fin")
    e(f"    v_max_i32 v{vAl}, s{sOk}, v{vAl}")
    e(f"    v_mul_f32 v{vLa}, {hex(f2u(1.0/32767.0))}, v{vLa}")
    e("    s_nop 4")
    e(f"    v_max3_f32 v{vMx}, abs(v{vO}), abs(v{vO+1}), abs(v{vO+2})")
    e(f"    v_max3_f32 v{vTmp}, abs(v{vO+4}), abs(v{vO+5}), abs(v{vO+6})")
    e(f"    v_max3_f32 v{vMx}, abs(v{vO+3}), abs(v{vO+7}), v{vMx}")
    e(f"    v_max3_f32 v{vMx}, v{vMx}, v{vTmp}, v{vTiny}")
    e(f"    v_rcp_f32 v{vTmp}, v{vMx}")
    e("    s_nop 0")
    for j in range(8):
        e(f"    v_mul_f32 v{vS+j}, v{vTmp}, v{vO+j}")
    for j in range(4):
        e(f"    v_cvt_pknorm_i16_f32 v{vOne+j}, v{vS+2*j}, v{vS+2*j+1}")
    e(f"    buffer_store_dwordx4 {r4(vOne)}, v{vWs}, {srd(sWS)}, s{sOff} offen {SPOL}")
    e(f"    v_add_f32 v{vM}, v{vS}, v{vS+1}")
    e(f"    v_add_f32 v{vTmp}, v{vS+2}, v{vS+3}")
    for j in range(2):
        e(f"    v_add_f32 v{vM}, v{vM}, v{vS+4+2*j}")
        e(f"    v_add_f32 v{vTmp}, v{vTmp}, v{vS+5+2*j}")
    e(f"    v_mul_f32 v{vMx}, v{vMx}, v{vLa}          ; scale / (32767 l)")
    e(f"    v_add_f32 v{vM}, v{vM}, v{vTmp}")
    e(f"    v_fma_f32 v{vMx}, v{vM}, 0, v{vMx}")
    e(f"    v_max_i32 v{vMx}, s{sOk}, v{vMx}")
    e(f"    buffer_store_dwordx2 {r2(vMx)}, v{vWl}, {srd(sWS)}, s{sOff} offen offset:1024 {SPOL}")
    e("    s_branch L_fin")
    e("L_gather:")
    e(f"    s_mov_b32 s{sCnt}, 0x40000")
    if PRE == 1:
        polls()
    e("    s_barrier")
    cstamp(13)
    if STAMP:
        e("    s_memrealtime s[62:63]")
        e("    s_waitcnt lgkmcnt(0)")
    if PRE == 2:
        polls()
    pv()
    cstamp(14)
    if PRE:
        e("    s_branch L_check")
    e("L_poll:")
    polls(bool(PRE))
    e("L_check:")
    e(f"    s_sub_u32 s{sCnt}, s{sCnt}, 1")
    e("    s_cbranch_scc1 L_fin")
    e("    s_waitcnt vmcnt(0)")
    for k in range(3):
        e(f"    v_min3_i32 v{vS+k}, v{vX+4*k}, v{vX+4*k+1}, v{vX+4*k+2}")
        e(f"    v_min3_i32 v{vS+4+k}, v{vX+4*k+3}, v{vML+2*k}, v{vML+2*k+1}")
    for k in range(3):
        e(f"    v_min_i32 v{vS+k}, v{vS+k}, v{vS+4+k}")
    for k in range(3):
        e(f"    v_cmp_eq_u32 s[{sMiss+2*k}:{sMiss+2*k+1}], s{sSent}, v{vS+k}")
    e(f"    v_max3_f32 v{vM}, v{vML+1}, v{vML+3}, v{vML+5}")
    e(f"    v_max_f32 v{vM}, v{vM}, v{vAl}")
    e(f"    s_or_b64 vcc, s[{sMiss}:{sMiss+1}], s[{sMiss+2}:{sMiss+3}]")
    e(f"    s_or_b64 vcc, vcc, s[{sMiss+4}:{sMiss+5}]")
    if not NOCHK:
        e("    s_cbranch_scc1 L_poll")
    e(f"    v_sub_f32 v{vAl}, v{vAl}, v{vM}")
    for k in range(3):
        e(f"    v_sub_f32 v{vML+2*k+1}, v{vML+2*k+1}, v{vM}")
    e(f"    v_exp_f32 v{vAl}, v{vAl}")
    for k in range(3):
        e(f"    v_exp_f32 v{vML+2*k+1}, v{vML+2*k+1}")
    vU = vS
    for k in range(3):
        for j in range(4):
            for h in range(2):
                e(f"    v_cvt_f32_i32_sdwa v{vU+k*8+2*j+h}, sext(v{vX+4*k+j}) dst_sel:DWORD dst_unused:UNUSED_PAD src0_sel:WORD_{h}")
        if k == 0:
            e(f"    v_add_f32 v{vM}, v{vAl}, v{vML+1}")
            e(f"    v_add_f32 v{vTmp}, v{vML+3}, v{vML+5}")
            e(f"    v_add_f32 v{vM}, v{vM}, v{vTmp}")
            e(f"    v_rcp_f32 v{vM}, v{vM}")
            e(f"    v_mul_f32 v{vAl}, v{vAl}, v{vLa}")
            for kk in range(3):
                e(f"    v_mul_f32 v{vML+2*kk}, v{vML+2*kk}, v{vML+2*kk+1}")
    for j in range(8):
        e(f"    v_mul_f32 v{vO+j}, v{vAl}, v{vO+j}")
    for k in range(3):
        for j in range(8):
            e(f"    v_fmac_f32 v{vO+j}, v{vML+2*k}, v{vU+k*8+j}")
    for j in range(8):
        e(f"    v_mul_f32 v{vO+j}, v{vM}, v{vO+j}")
    for j in range(4):
        e(f"    v_cvt_pk_bf16_f32 v{vOne+j}, v{vO+2*j}, v{vO+2*j+1}")
    e(f"    buffer_store_dwordx2 {r2(vOne)}, v{vOa}, {srd(sOUT)}, 0 offen {OPOL}")
    e(f"    buffer_store_dwordx2 {r2(vOne+2)}, v{vOa}, {srd(sOUT)}, 0 offen offset:32 {OPOL}")
    e("L_fin:")
    cstamp(15)
    if STAMP == 3:
        e("    s_waitcnt vmcnt(0)")
        cstamp(16)
        e(f"    s_cmp_lg_u32 s{sW}, 0")
        e("    s_cbranch_scc1 L_end")
        e(f"    s_add_u32 s{sT0}, s{sOff}, 15360")
        e("    v_lshlrev_b32 v21, 2, v1")
        e(f"    buffer_store_dword v19, v21, {srd(sWS)}, s{sT0} offen")
    if STAMP:
        e("    s_waitcnt vmcnt(0)")
        e("    s_memrealtime s[64:65]")
        e(f"    s_cmp_lg_u32 s{sW}, 0")
        e("    s_cbranch_scc1 L_end")
        e("    s_waitcnt lgkmcnt(0)")
        e("    s_mov_b64 exec, 1")
        e("    v_mov_b32 v20, s60")
        e("    v_mov_b32 v21, s62")
        e("    v_mov_b32 v22, s64")
        e("    s_getreg_b32 s58, hwreg(HW_REG_XCC_ID)")
        e("    v_mov_b32 v23, s58")
        e(f"    v_mov_b32 v{vTmp}, 16320")
        e(f"    buffer_store_dwordx4 v[20:23], v{vTmp}, {srd(sWS)}, s{sOff} offen")
    e("L_end:")
    e("    s_endpgm")
    e('.section .rodata,"a"')
    e(".p2align 6")
    e(f".amdhsa_kernel {NAME}_kernel")
    e(f"  .amdhsa_next_free_vgpr {nv}")
    e("  .amdhsa_next_free_sgpr 72")
    e(f"  .amdhsa_accum_offset {(nv+3)//4*4}")
    e("  .amdhsa_group_segment_fixed_size 0")
    e("  .amdhsa_kernarg_size 48")
    e("  .amdhsa_user_sgpr_count 2")
    e("  .amdhsa_user_sgpr_kernarg_segment_ptr 1")
    e("  .amdhsa_system_sgpr_workgroup_id_x 1")
    e(".end_amdhsa_kernel")
    return "\n".join(L) + "\n"

if __name__ == "__main__":
    kw = {}
    for a in sys.argv[2:]:
        k, v = a.split("=")
        kw[k] = v.replace("_", " ") if "POL" in k else int(v)
    open(sys.argv[1], "w").write(gen(**kw))
```

```python
import sys, math
from gen import HEADER, NAME, f2u

def gen(C=16, N=20, GI=4, WGMAP=1, POL="nt", STAMP=0, TK=2, PRIO=1, LW=0, NOSW=0, NOC=0, W=1, ROT=0, NOSENT=0, NOTK=0, OPOL="", LATE=4, PRE=1, N2=0, SPOL="sc1", LPOL="sc1", NOST=0, NOCHK=0, NOGA=0, ROT2=0, ROTS=0, A=0, RX=0, N3=0, R3=4, N0=0, R0=4, QB=12, ORD=0):
    L = []
    e = L.append
    NR = 512 // C
    NT = C // 4
    SLOT = C * 1024
    assert C == 16 and C < N <= 2 * C
    PB = 8 * SLOT
    MB = PB + 8192
    FLAG = MB + 1024
    lds = FLAG + 64
    srd = lambda x: f"s[{x}:{x+3}]"
    r4 = lambda x: f"v[{x}:{x+3}]"
    r2 = lambda x: f"v[{x}:{x+1}]"
    sK, sV, sQ, sWS, sOUT = 16, 20, 24, 28, 32
    sW, sG, sSp, sCnt, sOff, sO2, sC, sLds, sT0, sT1, sT2, sLin, sTk = 40, 41, 42, 43, 44, 45, 46, 47, 48, 49, 50, 51, 52
    e(HEADER + f"; @launch grid=(256,1,1) block=(320,1,1) lds={lds}")
    e('.amdgcn_target "amdgcn-amd-amdhsa--gfx950"')
    e(".text")
    e(f".globl {NAME}_kernel")
    e(".p2align 8")
    e(f".type {NAME}_kernel,@function")
    e(f"{NAME}_kernel:")
    e("    s_cmp_ge_u32 s2, 256")
    e("    s_cbranch_scc1 L_end")
    e("    s_load_dwordx4 s[4:7], s[0:1], 0")
    e("    s_load_dwordx4 s[8:11], s[0:1], 16")
    e("    s_load_dwordx4 s[12:15], s[0:1], 32")
    if STAMP:
        e("    s_memrealtime s[60:61]")
    e("    v_lshrrev_b32 v2, 6, v0")
    e("    v_and_b32 v1, 63, v0                 ; lane")
    e(f"    v_readfirstlane_b32 s{sW}, v2")
    if WGMAP == 0:
        e(f"    s_lshr_b32 s{sG}, s2, 2")
        e(f"    s_and_b32 s{sSp}, s2, 3")
    elif WGMAP == 1:
        e(f"    s_and_b32 s{sG}, s2, 63")
        e(f"    s_lshr_b32 s{sSp}, s2, 6")
    elif WGMAP == 2:
        e(f"    s_and_b32 s{sG}, s2, 7")
        e(f"    s_lshr_b32 s{sT0}, s2, 5")
        e(f"    s_lshl_b32 s{sG}, s{sG}, 3")
        e(f"    s_or_b32 s{sG}, s{sG}, s{sT0}")
        e(f"    s_bfe_u32 s{sSp}, s2, 0x20003")
    elif WGMAP == 3:
        e(f"    s_lshr_b32 s{sT0}, s2, 1")
        e(f"    s_xor_b32 s{sT0}, s{sT0}, s2")
        e(f"    s_and_b32 s{sT0}, s{sT0}, 1")
        e(f"    s_lshr_b32 s{sG}, s2, 3")
        e(f"    s_lshl_b32 s{sG}, s{sG}, 1")
        e(f"    s_or_b32 s{sG}, s{sG}, s{sT0}")
        e(f"    s_bfe_u32 s{sSp}, s2, 0x20001")
    e("    v_lshrrev_b32 v2, 4, v1              ; g = lane>>4")
    e("    v_and_b32 v3, 15, v1                 ; i = lane&15")
    e(f"    s_cmp_lg_u32 s{sW}, {LW}")
    e("    s_cbranch_scc1 L_consumer")
    vKo, vVo = 4, 8
    e("    v_xor_b32 v10, v3, v2")
    e("    v_lshlrev_b32 v10, 4, v10")
    e(f"    v_lshl_add_u32 v{vKo}, v2, 8, v10")
    e(f"    s_lshl_b32 s{sT0}, s{sG}, 21")
    e(f"    s_mov_b32 s{sK+2}, 0x200000")
    e(f"    s_mov_b32 s{sK+3}, 0x20000")
    sPos, sBase = 55, 53
    e(f"    s_lshl_b32 s{sBase}, s{sSp}, {14+A}")
    def mkoff():
        e(f"    s_and_b32 s{sPos}, s{sPos}, {NR-1}")
        if A == 0:
            e(f"    s_lshl_b32 s{sOff}, s{sPos}, 16")
        else:
            e(f"    s_lshr_b32 s{sOff}, s{sPos}, {A}")
            e(f"    s_lshl_b32 s{sOff}, s{sOff}, {16+A}")
            e(f"    s_and_b32 s{sO2}, s{sPos}, {(1<<A)-1}")
            e(f"    s_lshl_b32 s{sO2}, s{sO2}, 14")
            e(f"    s_or_b32 s{sOff}, s{sOff}, s{sO2}")
        e(f"    s_or_b32 s{sOff}, s{sOff}, s{sBase}")
        if QB > 12:
            e(f"    s_and_b32 s{sO2}, s{sOff}, {(1 << (QB+2)) - 1}")
            e(f"    s_xor_b32 s{sOff}, s{sOff}, s{sO2}")
            e(f"    s_lshr_b32 s{sO2}, s{sO2}, 2")
            e(f"    s_or_b32 s{sOff}, s{sOff}, s{sO2}")
    for j in range(1, 4):
        e(f"    v_xor_b32 v{vKo+j}, {j*64}, v{vKo}")
    e("    v_lshlrev_b32 v10, 1, v2")
    e("    v_xor_b32 v10, v3, v10")
    e("    v_lshlrev_b32 v10, 4, v10")
    e(f"    v_lshl_add_u32 v{vVo}, v2, 8, v10")
    e(f"    v_xor_b32 v{vVo+1}, 128, v{vVo}")
    e(f"    s_mov_b32 s{sV+2}, 0x200000")
    e(f"    s_mov_b32 s{sV+3}, 0x20000")
    e(f"    s_mul_i32 s{sPos}, s{sG}, {ROT}")
    if ROTS:
        e(f"    s_lshr_b32 s{sPos}, s{sPos}, {ROTS}")
    if RX:
        e(f"    s_lshr_b32 s{sT2}, s{sG}, 5")
        e(f"    s_mul_i32 s{sT2}, s{sT2}, {RX}")
        e(f"    s_add_u32 s{sPos}, s{sPos}, s{sT2}")
    if ROT2:
        e(f"    s_mul_i32 s{sT2}, s{sSp}, {ROT2}")
        e(f"    s_add_u32 s{sPos}, s{sPos}, s{sT2}")
    mkoff()
    e(f"    s_mul_i32 s{sLin}, s{sG}, {W}")
    e(f"    s_lshr_b32 s{sLin}, s{sLin}, 6")
    e(f"    s_sub_u32 s{sLin}, {NR-TK}, s{sLin}")
    e(f"    s_mov_b32 s{sLds}, 0")
    if NOSW:
        for j in range(6):
            e(f"    v_lshlrev_b32 v{vKo+j}, 4, v1")
    if PRIO:
        e(f"    s_setprio {PRIO}")
    e("    s_waitcnt lgkmcnt(0)")
    e(f"    s_add_u32 s{sK}, s6, s{sT0}")
    e(f"    s_addc_u32 s{sK+1}, s7, 0")
    e(f"    s_add_u32 s{sV}, s8, s{sT0}")
    e(f"    s_addc_u32 s{sV+1}, s9, 0")
    def lstamp(idx):
        if STAMP == 2:
            e("    s_memrealtime s[62:63]")
            e("    s_waitcnt lgkmcnt(0)")
            e(f"    v_writelane_b32 v20, s62, {idx}")
    if STAMP == 2:
        e("    v_mov_b32 v20, 0")
        e("    v_writelane_b32 v20, s60, 0")
        e("    s_mov_b32 s67, 4")
    lstamp(1)
    def ticket():
        e(f"    s_lshl_b32 s{sT0}, s{sG}, 2")
        e(f"    s_add_u32 s12, s12, s{sT0}")
        e(f"    s_addc_u32 s13, s13, 0")
        e(f"    s_mov_b32 s{sTk}, 1")
        if NOTK:
            e(f"    s_mov_b32 s{sTk}, s{sSp}")
        else:
            e(f"    s_atomic_add s{sTk}, s[12:13], 0 glc")
    stages = ([(0, N0, 0, R0), (0, N, R0, NR)] if N0 else [(0, N, 0, NR)]) + ([(1, N2 or N, 0, NR - R3), (1, N3, NR - R3, NR)] if N3 else [(1, N2 or N, 0, NR)])
    for si, (st, n, r0, r1) in enumerate(stages):
        if r0 == 0:
            e(f"    s_mov_b32 s{sCnt}, 0")
        e(f"L_load{si}:")
        for j in range(C):
            q, jj = (j % 4, j // 4) if ORD else (j // 4, j % 4)
            if ORD or jj == 0:
                e(f"    s_add_u32 m0, s{sLds}, {q*4096}")
                e(f"    s_add_u32 s{sO2}, s{sOff}, {q << QB}")
            e(f"    s_waitcnt vmcnt({n-1})")
            if j == n - 1 - C:
                if si == 0:
                    e(f"    s_cmp_lt_u32 s{sCnt}, 2")
                    e("    s_cbranch_scc1 L_nobar")
                e("    s_barrier")
                if si == 0:
                    e("L_nobar:")
            vo = vKo + jj if st == 0 else vVo + (jj % 2)
            e(f"    buffer_load_dwordx4 v{vo}, {srd(sK if st == 0 else sV)}, s{sO2} offen offset:{jj*1024} {POL} lds")
        e(f"    s_add_u32 s{sLds}, s{sLds}, {SLOT}")
        e(f"    s_and_b32 s{sLds}, s{sLds}, {PB-1}")
        e(f"    s_add_u32 s{sPos}, s{sPos}, 1")
        mkoff()
        if st == 1 and r1 == NR:
            assert r0 <= NR - TK and W == 1 and R0 >= 2
            e(f"    s_cmp_lg_u32 s{sCnt}, s{sLin}")
            e("    s_cbranch_scc1 L_notk")
            ticket()
            e("L_notk:")
        e(f"    s_add_u32 s{sCnt}, s{sCnt}, 1")
        e(f"    s_cmp_lt_u32 s{sCnt}, {r1}")
        e(f"    s_cbranch_scc1 L_load{si}")
    e(f"    v_mov_b32 v11, {FLAG}")
    e("    s_waitcnt lgkmcnt(0)")
    e(f"    v_mov_b32 v10, s{sTk}")
    e("    ds_write_b32 v11, v10")
    e(f"    s_waitcnt vmcnt({C}) lgkmcnt(0)")
    e("    s_barrier")
    e("    s_waitcnt vmcnt(0)")
    e("    s_barrier")
    if STAMP == 2:
        e("    s_mov_b32 m0, s67")
        lstamp("m0")
        e(f"    s_lshl_b32 s{sT0}, s{sG}, 16")
        e(f"    s_add_u32 s{sWS}, s14, s{sT0}")
        e(f"    s_addc_u32 s{sWS+1}, s15, 0")
        e(f"    s_mov_b32 s{sWS+2}, 0x10000")
        e(f"    s_mov_b32 s{sWS+3}, 0x20000")
        e(f"    s_lshl_b32 s{sT0}, s{sSp}, 14")
        e(f"    s_add_u32 s{sT0}, s{sT0}, 15360")
        e("    v_lshlrev_b32 v21, 2, v1")
        e(f"    buffer_store_dword v20, v21, {srd(sWS)}, s{sT0} offen")
    e("    s_endpgm")
    e("L_consumer:")
    nst = [0]
    def cstamp(idx, rnd=None):
        if STAMP != 3: return
        nst[0] += 1
        if rnd is not None:
            e(f"    s_cmp_lg_u32 s{sCnt}, {rnd}")
            e(f"    s_cbranch_scc1 L_cs{nst[0]}")
        e("    s_memrealtime s[64:65]")
        e("    s_waitcnt lgkmcnt(0)")
        e(f"    v_writelane_b32 v19, s64, {idx}")
        e(f"L_cs{nst[0]}:")
    vKA, vVA = 4, 8
    vM, vMs, vMx, vAl, vTmp, vWs, vWl, vOa = 10, 11, 12, 13, 14, 15, 16, 17
    vOne, vLa, vO, vQ = 20, 24, 28, 36
    vP = 52
    vF = vP + 24
    vS = vF + 32
    vX, vML = vS + 32, vS + 48
    vPW, vPR = 0, 3
    vAc = 18
    vTiny = 2
    sSent, sOk = 56, 57
    nv = vS + 4 * NR
    if LW == 0:
        e(f"    s_sub_u32 s{sW}, s{sW}, 1")
    e(f"    v_lshlrev_b32 v{vTmp}, 4, v2")
    e(f"    v_lshl_add_u32 v{vTmp}, v3, 8, v{vTmp}    ; Q: i*256 + g*16")
    e(f"    s_lshl_b32 s{sT1}, s{sG}, 12")
    e(f"    s_lshl_b32 s{sT0}, s{sG}, 16")
    e(f"    s_mov_b32 s{sQ+2}, 0x1000")
    e(f"    s_mov_b32 s{sQ+3}, 0x20000")
    e(f"    s_mov_b32 s{sWS+2}, 0x10000")
    e(f"    s_mov_b32 s{sWS+3}, 0x20000")
    e(f"    s_mov_b32 s{sOUT+2}, 0x1000")
    e(f"    s_mov_b32 s{sOUT+3}, 0x20000")
    e(f"    s_mul_i32 s{sT2}, s{sW}, 1536")
    e(f"    v_lshl_add_u32 v{vWs}, v1, 4, s{sT2}")
    e(f"    v_lshl_add_u32 v{vWl}, v1, 3, s{sT2}")
    e(f"    s_mov_b32 s{sSent}, 0x80008000")
    for j in range(4):
        e(f"    v_mov_b32 v{vF+j}, s{sSent}")
    e(f"    s_lshl_b32 s{sOff}, s{sSp}, 14")
    e("    s_waitcnt lgkmcnt(0)")
    e(f"    s_add_u32 s{sQ}, s4, s{sT1}")
    e(f"    s_addc_u32 s{sQ+1}, s5, 0")
    e(f"    s_add_u32 s{sWS}, s14, s{sT0}")
    e(f"    s_addc_u32 s{sWS+1}, s15, 0")
    e(f"    s_add_u32 s{sOUT}, s10, s{sT1}")
    e(f"    s_addc_u32 s{sOUT+1}, s11, 0")
    for s in range(4):
        e(f"    buffer_load_dwordx4 {r4(vQ+s*4)}, v{vTmp}, {srd(sQ)}, 0 offen offset:{s*64}")
    if NOSENT:
        e("    s_branch L_nosent")
    e(f"    buffer_store_dwordx4 {r4(vF)}, v{vWs}, {srd(sWS)}, s{sOff} offen {SPOL}")
    e(f"    buffer_store_dwordx2 {r2(vF)}, v{vWl}, {srd(sWS)}, s{sOff} offen offset:1024 {SPOL}")
    if NOSENT:
        e("L_nosent:")
    e(f"    v_xor_b32 v{vMx}, v2, v3")
    e(f"    v_lshlrev_b32 v{vMx}, 4, v{vMx}")
    e(f"    v_lshl_add_u32 v{vKA}, v3, 8, v{vMx}")
    e(f"    s_lshl_b32 s{sT2}, s{sW}, 12")
    e(f"    v_add_u32 v{vKA}, s{sT2}, v{vKA}")
    for s in range(1, 4):
        e(f"    v_xor_b32 v{vKA+s}, {s*64}, v{vKA}")
    e(f"    v_lshrrev_b32 v{vMx}, 2, v1               ; key (0..15)")
    e(f"    v_bfe_u32 v{vAl}, v1, 1, 1")
    e(f"    s_lshl_b32 s{sT2}, s{sW}, 2")
    e(f"    v_or_b32 v{vAl}, s{sT2}, v{vAl}")
    e(f"    v_and_b32 v{vM}, 7, v{vMx}")
    e(f"    v_lshlrev_b32 v{vM}, 1, v{vM}")
    e(f"    v_xor_b32 v{vAl}, v{vAl}, v{vM}")
    e(f"    v_lshlrev_b32 v{vAl}, 4, v{vAl}")
    e(f"    v_lshl_add_u32 v{vAl}, v{vMx}, 8, v{vAl}")
    e(f"    v_and_b32 v{vM}, 1, v1")
    e(f"    v_lshl_add_u32 v{vVA}, v{vM}, 3, v{vAl}")
    e(f"    v_xor_b32 v{vVA+1}, 32, v{vVA}")
    e(f"    v_lshlrev_b32 v{vOa}, 8, v3")
    e(f"    v_lshl_add_u32 v{vOa}, v2, 3, v{vOa}")
    e(f"    s_lshl_b32 s{sT2}, s{sW}, 6")
    e(f"    v_add_u32 v{vOa}, s{sT2}, v{vOa}")
    c = (128 ** -0.5) * math.log2(math.e)
    e(f"    s_mov_b32 s{sC}, {hex(f2u(c))}      ; D^-0.5 * log2(e)")
    e(f"    s_mov_b32 s{sT2}, {PB}")
    e(f"    v_lshl_add_u32 v{vPR}, v1, 4, s{sT2}")
    e(f"    s_lshr_b32 s{sT0}, s{sW}, 1")
    e(f"    s_lshl_b32 s{sT0}, s{sT0}, 10")
    e(f"    s_and_b32 s{sT1}, s{sW}, 1")
    e(f"    s_lshl_b32 s{sT1}, s{sT1}, 3")
    e(f"    s_add_u32 s{sT0}, s{sT0}, s{sT1}")
    e(f"    v_add_u32 v{vPW}, s{sT0}, v{vPR}          ; P write: + (w>>1)*1024 + (w&1)*8")
    e(f"    s_mov_b32 s{sT2}, {MB}")
    e(f"    v_lshl_add_u32 v{vAc}, v1, 4, s{sT2}")
    e(f"    v_mov_b32 v{vTiny}, 0x00800000")
    e(f"    v_mov_b32 v{vM}, 0xff800000")
    for j in range(4):
        e(f"    v_mov_b32 v{vOne+j}, 0x3f803f80")
        e(f"    v_mov_b32 v{vLa+j}, 0")
    for j in range(8):
        e(f"    v_mov_b32 v{vO+j}, 0")
    for k in range(1, 4):
        e(f"    s_add_u32 s{sT0+k-1}, s{sSp}, {k}")
        e(f"    s_and_b32 s{sT0+k-1}, s{sT0+k-1}, 3")
        e(f"    s_lshl_b32 s{sT0+k-1}, s{sT0+k-1}, 14")
    if STAMP == 3:
        e("    v_mov_b32 v19, 0")
        e("    v_writelane_b32 v19, s60, 0")
    cstamp(1)
    e(f"    s_waitcnt vmcnt({0 if NOSENT else 2})")
    cstamp(2)
    def vread(r, fb):
        for ks in range(2):
            for db in range(2):
                for tt in range(2):
                    e(f"    ds_read_b64_tr_b16 {r2(fb+ks*8+db*4+tt*2)}, v{vVA+db} offset:{(r%4)*SLOT+(2*ks+tt)*4096}")
        if r % 4 == 3:
            for db in range(2):
                e(f"    v_xor_b32 v{vVA+db}, {4*SLOT}, v{vVA+db}")
    def pvm(r, fb, ks):
        for db in range(2):
            e(f"    v_mfma_f32_16x16x32_bf16 {r4(vO+db*4)}, {r4(fb+ks*8+db*4)}, {r4(vP+(r%3)*8+ks*4)}, {r4(vO+db*4)}")
    def pread(r):
        for ks in range(2):
            e(f"    ds_read_b128 {r4(vP+(r%3)*8+ks*4)}, v{vPR} offset:{(r%4)*2048+ks*1024}")
    def lsum(r):
        for ks in range(2):
            e(f"    v_mfma_f32_16x16x32_bf16 {r4(vLa)}, {r4(vOne)}, {r4(vP+(r%3)*8+ks*4)}, {r4(vLa)}")
    def pmake(rs):
        for r in rs:
            for j in range(4):
                e(f"    v_fma_f32 v{vS+4*r+j}, v{vS+4*r+j}, s{sC}, -v{vMs}")
        for r in rs:
            for j in range(4):
                e(f"    v_exp_f32 v{vS+4*r+j}, v{vS+4*r+j}")
        e("    s_nop 0")
        for r in rs:
            for u in range(2):
                e(f"    v_cvt_pk_bf16_f32 v{vS+4*r+u}, v{vS+4*r+2*u}, v{vS+4*r+2*u+1}")
            e(f"    ds_write_b64 v{vPW}, {r2(vS+4*r)} offset:{(r%4)*2048}")
    def pv():
        vread(NR - 1, vF)
        e("    s_waitcnt lgkmcnt(4)")
        pvm(NR - 1, vF, 0)
        e("    s_waitcnt lgkmcnt(0)")
        pvm(NR - 1, vF, 1)
    def polls(guard=False):
        for k in range(3):
            if guard:
                e(f"    s_cmp_eq_u64 s[{sMiss+2*k}:{sMiss+2*k+1}], 0")
                e(f"    s_cbranch_scc1 L_have{k}")
            e(f"    buffer_load_dwordx4 {r4(vX+k*4)}, v{vWs}, {srd(sWS)}, s{sT0+k} offen {LPOL}")
            e(f"    buffer_load_dwordx2 {r2(vML+k*2)}, v{vWl}, {srd(sWS)}, s{sT0+k} offen offset:1024 {LPOL}")
            if guard:
                e(f"L_have{k}:")
    sMiss = 66
    def smax(r):
        e(f"    v_max3_f32 v{vM}, v{vS+4*r}, v{vS+4*r+1}, v{vM}")
        e(f"    v_max3_f32 v{vM}, v{vS+4*r+2}, v{vS+4*r+3}, v{vM}")
    for r in range(NR):
        if r == LATE:
            e("    s_waitcnt vmcnt(0)")
        e("    s_barrier")
        for q in range(4):
            e(f"    ds_read_b128 {r4(vF+q*4)}, v{vKA+q} offset:{(r%4)*SLOT}")
        if r % 4 == 3:
            for q in range(4):
                e(f"    v_xor_b32 v{vKA+q}, {4*SLOT}, v{vKA+q}")
        for q in range(4):
            e(f"    s_waitcnt lgkmcnt({3-q})")
            e(f"    v_mfma_f32_16x16x32_bf16 {r4(vS+4*r)}, {r4(vF+q*4)}, {r4(vQ+q*4)}, {'0' if q == 0 else r4(vS+4*r)}")
        if r:
            smax(r - 1)
    e(f"    s_lshl_b32 s{sCnt}, s{sW}, 2")
    e(f"    v_add_u32 v{vMx}, s{sCnt}, v{vAc}")
    e("    s_nop 3")
    smax(NR - 1)
    for sw in ("32", "16"):
        e(f"    v_mov_b32 v{vTmp}, v{vM}")
        e("    s_nop 1")
        e(f"    v_permlane{sw}_swap_b32 v{vTmp}, v{vM}")
        e("    s_nop 1")
        e(f"    v_max_f32 v{vM}, v{vTmp}, v{vM}")
    e(f"    ds_write_b32 v{vMx}, v{vM}")
    e("    s_waitcnt lgkmcnt(0)")
    e("    s_barrier")
    e(f"    ds_read_b128 {r4(vF)}, v{vAc}")
    e("    s_waitcnt lgkmcnt(0)")
    e(f"    v_max3_f32 v{vM}, v{vF}, v{vF+1}, v{vF+2}")
    e(f"    v_max_f32 v{vM}, v{vM}, v{vF+3}")
    e(f"    v_mul_f32 v{vMs}, s{sC}, v{vM}")
    pmake([0, 1, 2])
    e("    s_waitcnt lgkmcnt(0)")
    e("    s_barrier")
    pread(0); pread(1); pread(2)
    vread(0, vF)
    e("    s_waitcnt lgkmcnt(8)")
    lsum(0); lsum(1); lsum(2)
    e("    s_waitcnt lgkmcnt(0)")
    vread(1, vF + 16)
    pvm(0, vF, 0); pvm(0, vF, 1)
    pmake([3])
    e("    s_waitcnt lgkmcnt(0)")
    pvm(1, vF + 16, 0); pvm(1, vF + 16, 1)
    for r in range(2, NR - 1):
        if r == NR - 2:
            e(f"    v_mov_b32 v{vTmp}, {FLAG}")
        e("    s_barrier")
        if r == NR - 2:
            e(f"    ds_read_b32 v{vTmp}, v{vTmp}")
        vread(r, vF)
        pread(r + 1)
        wr = r + 2 < NR
        if wr:
            pmake([r + 2])
        e(f"    s_waitcnt lgkmcnt({6 + wr})")
        pvm(r, vF, 0)
        e(f"    s_waitcnt lgkmcnt({2 + wr})")
        pvm(r, vF, 1)
        e("    s_waitcnt lgkmcnt(0)")
        lsum(r + 1)
    e(f"    v_readfirstlane_b32 s{sTk}, v{vTmp}")
    e("    s_nop 6")
    e(f"    v_log_f32 v{vAl}, v{vLa}")
    e(f"    v_rcp_f32 v{vLa}, v{vLa}                 ; 1/l")
    e(f"    s_add_u32 s{sOk}, s{sSent}, 0x8000")
    e(f"    v_add_f32 v{vAl}, v{vMs}, v{vAl}")
    cstamp(12)
    e(f"    s_cmp_eq_u32 s{sTk}, {7 if NOGA else 3}")
    e("    s_cbranch_scc1 L_gather")
    e("    s_barrier")
    cstamp(13)
    if STAMP:
        e("    s_memrealtime s[62:63]")
        e("    s_waitcnt lgkmcnt(0)")
    pv()
    cstamp(14)
    if NOST:
        e("    s_branch L_fin")
    e(f"    v_max_i32 v{vAl}, s{sOk}, v{vAl}")
    e(f"    v_mul_f32 v{vLa}, {hex(f2u(1.0/32767.0))}, v{vLa}")
    e("    s_nop 4")
    e(f"    v_max3_f32 v{vMx}, abs(v{vO}), abs(v{vO+1}), abs(v{vO+2})")
    e(f"    v_max3_f32 v{vTmp}, abs(v{vO+4}), abs(v{vO+5}), abs(v{vO+6})")
    e(f"    v_max3_f32 v{vMx}, abs(v{vO+3}), abs(v{vO+7}), v{vMx}")
    e(f"    v_max3_f32 v{vMx}, v{vMx}, v{vTmp}, v{vTiny}")
    e(f"    v_rcp_f32 v{vTmp}, v{vMx}")
    e("    s_nop 0")
    for j in range(8):
        e(f"    v_mul_f32 v{vS+j}, v{vTmp}, v{vO+j}")
    for j in range(4):
        e(f"    v_cvt_pknorm_i16_f32 v{vOne+j}, v{vS+2*j}, v{vS+2*j+1}")
    e(f"    buffer_store_dwordx4 {r4(vOne)}, v{vWs}, {srd(sWS)}, s{sOff} offen {SPOL}")
    e(f"    v_add_f32 v{vM}, v{vS}, v{vS+1}")
    e(f"    v_add_f32 v{vTmp}, v{vS+2}, v{vS+3}")
    for j in range(2):
        e(f"    v_add_f32 v{vM}, v{vM}, v{vS+4+2*j}")
        e(f"    v_add_f32 v{vTmp}, v{vTmp}, v{vS+5+2*j}")
    e(f"    v_mul_f32 v{vMx}, v{vMx}, v{vLa}          ; scale / (32767 l)")
    e(f"    v_add_f32 v{vM}, v{vM}, v{vTmp}")
    e(f"    v_fma_f32 v{vMx}, v{vM}, 0, v{vMx}")
    e(f"    v_max_i32 v{vMx}, s{sOk}, v{vMx}")
    e(f"    buffer_store_dwordx2 {r2(vMx)}, v{vWl}, {srd(sWS)}, s{sOff} offen offset:1024 {SPOL}")
    e("    s_branch L_fin")
    e("L_gather:")
    e(f"    s_mov_b32 s{sCnt}, 0x40000")
    if PRE == 1:
        polls()
    e("    s_barrier")
    cstamp(13)
    if STAMP:
        e("    s_memrealtime s[62:63]")
        e("    s_waitcnt lgkmcnt(0)")
    if PRE == 2:
        polls()
    pv()
    cstamp(14)
    if PRE:
        e("    s_branch L_check")
    e("L_poll:")
    polls(bool(PRE))
    e("L_check:")
    e(f"    s_sub_u32 s{sCnt}, s{sCnt}, 1")
    e("    s_cbranch_scc1 L_fin")
    e("    s_waitcnt vmcnt(0)")
    for k in range(3):
        e(f"    v_min3_i32 v{vS+k}, v{vX+4*k}, v{vX+4*k+1}, v{vX+4*k+2}")
        e(f"    v_min3_i32 v{vS+4+k}, v{vX+4*k+3}, v{vML+2*k}, v{vML+2*k+1}")
    for k in range(3):
        e(f"    v_min_i32 v{vS+k}, v{vS+k}, v{vS+4+k}")
    for k in range(3):
        e(f"    v_cmp_eq_u32 s[{sMiss+2*k}:{sMiss+2*k+1}], s{sSent}, v{vS+k}")
    e(f"    v_max3_f32 v{vM}, v{vML+1}, v{vML+3}, v{vML+5}")
    e(f"    v_max_f32 v{vM}, v{vM}, v{vAl}")
    e(f"    s_or_b64 vcc, s[{sMiss}:{sMiss+1}], s[{sMiss+2}:{sMiss+3}]")
    e(f"    s_or_b64 vcc, vcc, s[{sMiss+4}:{sMiss+5}]")
    if not NOCHK:
        e("    s_cbranch_scc1 L_poll")
    e(f"    v_sub_f32 v{vAl}, v{vAl}, v{vM}")
    for k in range(3):
        e(f"    v_sub_f32 v{vML+2*k+1}, v{vML+2*k+1}, v{vM}")
    e(f"    v_exp_f32 v{vAl}, v{vAl}")
    for k in range(3):
        e(f"    v_exp_f32 v{vML+2*k+1}, v{vML+2*k+1}")
    vU = vS
    for k in range(3):
        for j in range(4):
            for h in range(2):
                e(f"    v_cvt_f32_i32_sdwa v{vU+k*8+2*j+h}, sext(v{vX+4*k+j}) dst_sel:DWORD dst_unused:UNUSED_PAD src0_sel:WORD_{h}")
        if k == 0:
            e(f"    v_add_f32 v{vM}, v{vAl}, v{vML+1}")
            e(f"    v_add_f32 v{vTmp}, v{vML+3}, v{vML+5}")
            e(f"    v_add_f32 v{vM}, v{vM}, v{vTmp}")
            e(f"    v_rcp_f32 v{vM}, v{vM}")
            e(f"    v_mul_f32 v{vAl}, v{vAl}, v{vLa}")
            for kk in range(3):
                e(f"    v_mul_f32 v{vML+2*kk}, v{vML+2*kk}, v{vML+2*kk+1}")
    for j in range(8):
        e(f"    v_mul_f32 v{vO+j}, v{vAl}, v{vO+j}")
    for k in range(3):
        for j in range(8):
            e(f"    v_fmac_f32 v{vO+j}, v{vML+2*k}, v{vU+k*8+j}")
    for j in range(8):
        e(f"    v_mul_f32 v{vO+j}, v{vM}, v{vO+j}")
    for j in range(4):
        e(f"    v_cvt_pk_bf16_f32 v{vOne+j}, v{vO+2*j}, v{vO+2*j+1}")
    e(f"    buffer_store_dwordx2 {r2(vOne)}, v{vOa}, {srd(sOUT)}, 0 offen {OPOL}")
    e(f"    buffer_store_dwordx2 {r2(vOne+2)}, v{vOa}, {srd(sOUT)}, 0 offen offset:32 {OPOL}")
    e("L_fin:")
    cstamp(15)
    if STAMP == 3:
        e("    s_waitcnt vmcnt(0)")
        cstamp(16)
        e(f"    s_cmp_lg_u32 s{sW}, 0")
        e("    s_cbranch_scc1 L_end")
        e(f"    s_add_u32 s{sT0}, s{sOff}, 15360")
        e("    v_lshlrev_b32 v21, 2, v1")
        e(f"    buffer_store_dword v19, v21, {srd(sWS)}, s{sT0} offen")
    if STAMP:
        e("    s_waitcnt vmcnt(0)")
        e("    s_memrealtime s[64:65]")
        e(f"    s_cmp_lg_u32 s{sW}, 0")
        e("    s_cbranch_scc1 L_end")
        e("    s_waitcnt lgkmcnt(0)")
        e("    s_mov_b64 exec, 1")
        e("    v_mov_b32 v20, s60")
        e("    v_mov_b32 v21, s62")
        e("    v_mov_b32 v22, s64")
        e("    s_getreg_b32 s58, hwreg(HW_REG_XCC_ID)")
        e("    v_mov_b32 v23, s58")
        e(f"    v_mov_b32 v{vTmp}, 16320")
        e(f"    buffer_store_dwordx4 v[20:23], v{vTmp}, {srd(sWS)}, s{sOff} offen")
    e("L_end:")
    e("    s_endpgm")
    e('.section .rodata,"a"')
    e(".p2align 6")
    e(f".amdhsa_kernel {NAME}_kernel")
    e(f"  .amdhsa_next_free_vgpr {nv}")
    e("  .amdhsa_next_free_sgpr 72")
    e(f"  .amdhsa_accum_offset {(nv+3)//4*4}")
    e("  .amdhsa_group_segment_fixed_size 0")
    e("  .amdhsa_kernarg_size 48")
    e("  .amdhsa_user_sgpr_count 2")
    e("  .amdhsa_user_sgpr_kernarg_segment_ptr 1")
    e("  .amdhsa_system_sgpr_workgroup_id_x 1")
    e(".end_amdhsa_kernel")
    return "\n".join(L) + "\n"

if __name__ == "__main__":
    kw = {}
    for a in sys.argv[2:]:
        k, v = a.split("=")
        kw[k] = v.replace("_", " ") if "POL" in k else int(v)
    open(sys.argv[1], "w").write(gen(**kw))
```

```python
import sys, math
from gen import HEADER, NAME, f2u

def gen(C=16, N=20, GI=4, WGMAP=1, POL="nt", STAMP=0, TK=2, PRIO=1, LW=0, NOSW=0, NOC=0, W=1, ROT=0, NOSENT=0, NOTK=0, OPOL="", LATE=4, PRE=1, N2=0, SPOL="sc1", LPOL="sc1", NOST=0, NOCHK=0, NOGA=0, ROT2=0, ROTS=0, A=0, RX=0, N3=0, R3=4, N0=0, R0=4, QB=12, ORD=0, GG=0, SCH='', LOOP=0, XL=0, XP=1, I1=3, I2=5, RB=1, XF=4, NOASK=0, NOANN=0, PMAX=0x40000, ANN3=0, ASK1=0, PUB=7, MK=0, WT=1):
    L = []
    e = L.append
    NR = 512 // C
    NT = C // 4
    SLOT = C * 1024
    assert C == 16 and C < N <= 2 * C
    PB = 8 * SLOT
    MB = PB + 8192
    FLAG = MB + 1024
    lds = FLAG + 64
    srd = lambda x: f"s[{x}:{x+3}]"
    r4 = lambda x: f"v[{x}:{x+3}]"
    r2 = lambda x: f"v[{x}:{x+1}]"
    sK, sV, sQ, sWS, sOUT = 16, 20, 24, 28, 32
    sW, sG, sSp, sCnt, sOff, sO2, sC, sLds, sT0, sT1, sT2, sLin, sTk = 40, 41, 42, 43, 44, 45, 46, 47, 48, 49, 50, 51, 52
    e(HEADER + f"; @launch grid=(256,1,1) block=(320,1,1) lds={lds}")
    e('.amdgcn_target "amdgcn-amd-amdhsa--gfx950"')
    e(".text")
    e(f".globl {NAME}_kernel")
    e(".p2align 8")
    e(f".type {NAME}_kernel,@function")
    e(f"{NAME}_kernel:")
    e("    s_cmp_ge_u32 s2, 256")
    e("    s_cbranch_scc1 L_end")
    e("    s_load_dwordx4 s[4:7], s[0:1], 0")
    e("    s_load_dwordx4 s[8:11], s[0:1], 16")
    e("    s_load_dwordx4 s[12:15], s[0:1], 32")
    if STAMP:
        e("    s_memrealtime s[60:61]")
    e("    v_lshrrev_b32 v2, 6, v0")
    e("    v_and_b32 v1, 63, v0                 ; lane")
    e(f"    v_readfirstlane_b32 s{sW}, v2")
    if WGMAP == 0:
        e(f"    s_lshr_b32 s{sG}, s2, 2")
        e(f"    s_and_b32 s{sSp}, s2, 3")
    elif WGMAP == 1:
        e(f"    s_and_b32 s{sG}, s2, 63")
        e(f"    s_lshr_b32 s{sSp}, s2, 6")
    elif WGMAP == 2:
        e(f"    s_and_b32 s{sG}, s2, 7")
        e(f"    s_lshr_b32 s{sT0}, s2, 5")
        e(f"    s_lshl_b32 s{sG}, s{sG}, 3")
        e(f"    s_or_b32 s{sG}, s{sG}, s{sT0}")
        e(f"    s_bfe_u32 s{sSp}, s2, 0x20003")
    elif WGMAP == 3:
        e(f"    s_lshr_b32 s{sT0}, s2, 1")
        e(f"    s_xor_b32 s{sT0}, s{sT0}, s2")
        e(f"    s_and_b32 s{sT0}, s{sT0}, 1")
        e(f"    s_lshr_b32 s{sG}, s2, 3")
        e(f"    s_lshl_b32 s{sG}, s{sG}, 1")
        e(f"    s_or_b32 s{sG}, s{sG}, s{sT0}")
        e(f"    s_bfe_u32 s{sSp}, s2, 0x20001")
    e("    v_lshrrev_b32 v2, 4, v1              ; g = lane>>4")
    e("    v_and_b32 v3, 15, v1                 ; i = lane&15")
    e(f"    s_cmp_lg_u32 s{sW}, {LW}")
    e("    s_cbranch_scc1 L_consumer")
    vKo, vVo = 4, 8
    e("    v_xor_b32 v10, v3, v2")
    e("    v_lshlrev_b32 v10, 4, v10")
    e(f"    v_lshl_add_u32 v{vKo}, v2, 8, v10")
    e(f"    s_lshl_b32 s{sT0}, s{sG}, 21")
    if GG:
        e(f"    s_and_b32 s{sT0}, s{sT0}, {hex(0xffffffff ^ ((1 << (21+GG)) - 1))}")
    e(f"    s_mov_b32 s{sK+2}, {hex(0x200000 << GG)}")
    e(f"    s_mov_b32 s{sK+3}, 0x20000")
    sPos, sBase = 55, 53
    e(f"    s_lshl_b32 s{sBase}, s{sSp}, {14+A}")
    if GG:
        e(f"    s_and_b32 s{sT1}, s{sG}, {(1 << GG) - 1}")
        e(f"    s_lshl_b32 s{sT1}, s{sT1}, 16")
        e(f"    s_or_b32 s{sBase}, s{sBase}, s{sT1}")
    def mkoff():
        e(f"    s_and_b32 s{sPos}, s{sPos}, {NR-1}")
        if A == 0:
            e(f"    s_lshl_b32 s{sOff}, s{sPos}, {16+GG}")
        else:
            e(f"    s_lshr_b32 s{sOff}, s{sPos}, {A}")
            e(f"    s_lshl_b32 s{sOff}, s{sOff}, {16+A}")
            e(f"    s_and_b32 s{sO2}, s{sPos}, {(1<<A)-1}")
            e(f"    s_lshl_b32 s{sO2}, s{sO2}, 14")
            e(f"    s_or_b32 s{sOff}, s{sOff}, s{sO2}")
        e(f"    s_or_b32 s{sOff}, s{sOff}, s{sBase}")
        if QB > 12:
            e(f"    s_and_b32 s{sO2}, s{sOff}, {(1 << (QB+2)) - 1}")
            e(f"    s_xor_b32 s{sOff}, s{sOff}, s{sO2}")
            e(f"    s_lshr_b32 s{sO2}, s{sO2}, 2")
            e(f"    s_or_b32 s{sOff}, s{sOff}, s{sO2}")
    for j in range(1, 4):
        e(f"    v_xor_b32 v{vKo+j}, {j*64}, v{vKo}")
    e("    v_lshlrev_b32 v10, 1, v2")
    e("    v_xor_b32 v10, v3, v10")
    e("    v_lshlrev_b32 v10, 4, v10")
    e(f"    v_lshl_add_u32 v{vVo}, v2, 8, v10")
    e(f"    v_xor_b32 v{vVo+1}, 128, v{vVo}")
    e(f"    s_mov_b32 s{sV+2}, {hex(0x200000 << GG)}")
    e(f"    s_mov_b32 s{sV+3}, 0x20000")
    e(f"    s_mul_i32 s{sPos}, s{sG}, {ROT}")
    if GG:
        e(f"    s_lshr_b32 s{sPos}, s{sG}, {GG}")
        e(f"    s_mul_i32 s{sPos}, s{sPos}, {ROT}")
    if ROTS:
        e(f"    s_lshr_b32 s{sPos}, s{sPos}, {ROTS}")
    if RX:
        e(f"    s_lshr_b32 s{sT2}, s{sG}, 5")
        e(f"    s_mul_i32 s{sT2}, s{sT2}, {RX}")
        e(f"    s_add_u32 s{sPos}, s{sPos}, s{sT2}")
    if ROT2:
        e(f"    s_mul_i32 s{sT2}, s{sSp}, {ROT2}")
        e(f"    s_add_u32 s{sPos}, s{sPos}, s{sT2}")
    mkoff()
    if XL == 2:
        e(f"    s_cmp_eq_u32 s{sSp}, 3")
        e(f"    s_cselect_b32 s{sLin}, {PUB}, -1")
    else:
        e(f"    s_mov_b32 s{sLin}, {NR-TK}")
    e(f"    s_mov_b32 s{sLds}, 0")
    if NOSW:
        for j in range(6):
            e(f"    v_lshlrev_b32 v{vKo+j}, 4, v1")
    if PRIO:
        e(f"    s_setprio {PRIO}")
    e("    s_waitcnt lgkmcnt(0)")
    e(f"    s_add_u32 s{sK}, s6, s{sT0}")
    e(f"    s_addc_u32 s{sK+1}, s7, 0")
    e(f"    s_add_u32 s{sV}, s8, s{sT0}")
    e(f"    s_addc_u32 s{sV+1}, s9, 0")
    def lstamp(idx):
        if STAMP == 2:
            e("    s_memrealtime s[62:63]")
            e("    s_waitcnt lgkmcnt(0)")
            e(f"    v_writelane_b32 v20, s62, {idx}")
    if STAMP == 2:
        e("    v_mov_b32 v20, 0")
        e("    v_writelane_b32 v20, s60, 0")
        e("    s_mov_b32 s67, 4")
    lstamp(1)
    def dbgaddr():
        e(f"    s_lshl_b32 s{sT0}, s{sG}, 2")
        e(f"    s_add_u32 s12, s12, s{sT0}")
        e(f"    s_addc_u32 s13, s13, 0")
    def xshift(d):
        e(f"    s_getreg_b32 s{d}, hwreg(HW_REG_XCC_ID, 0, 3)")
        e(f"    s_mul_i32 s{d}, s{d}, 3")
        e(f"    s_add_u32 s{d}, s{d}, 4")
    def announce():
        dbgaddr()
        xshift(sT1)
        e(f"    s_lshl_b32 s{sT1}, 1, s{sT1}")
        if ANN3:
            e(f"    s_cmp_lg_u32 s{sSp}, 3")
            e("    s_cbranch_scc1 L_noann")
        if not NOANN:
            e(f"    s_atomic_add s{sT1}, s[12:13], 0 glc")
        e("L_noann:")
    if XL == 1 and XP == 0:
        announce()
    def ticket():
        if not XL:
            dbgaddr()
        e(f"    s_mov_b32 s{sTk}, 1")
        if NOTK:
            e(f"    s_mov_b32 s{sTk}, s{sSp}")
        else:
            e(f"    s_atomic_add s{sTk}, s[12:13], 0 glc")
    stages = ([(0, N0, 0, R0), (0, N, R0, NR)] if N0 else [(0, N, 0, NR)]) + ([(1, N2 or N, 0, NR - R3), (1, N3, NR - R3, NR)] if N3 else [(1, N2 or N, 0, NR)])
    if SCH:
        stages = []
        for st, part in enumerate(SCH.split("/")):
            r0 = 0
            for x in part.split(","):
                cnt, n = map(int, x.split("x"))
                assert 1 <= n <= 32
                stages.append((st, n, r0, r0 + cnt)); r0 += cnt
            assert r0 == NR
        assert stages[0][3] >= 2
    for si, (st, n, r0, r1) in enumerate(stages):
        if r0 == 0:
            e(f"    s_mov_b32 s{sCnt}, 0")
        e(f"L_load{si}:")
        for j in range(C):
            q, jj = (j % 4, j // 4) if ORD else (j // 4, j % 4)
            if ORD or jj == 0:
                e(f"    s_add_u32 m0, s{sLds}, {q*4096}")
                e(f"    s_add_u32 s{sO2}, s{sOff}, {q << QB}")
            e(f"    s_waitcnt vmcnt({n-1})")
            if j == max(0, n - 1 - C):
                if si == 0:
                    e(f"    s_cmp_lt_u32 s{sCnt}, 2")
                    e("    s_cbranch_scc1 L_nobar")
                e("    s_barrier")
                if si == 0:
                    e("L_nobar:")
            vo = vKo + jj if st == 0 else vVo + (jj % 2)
            e(f"    buffer_load_dwordx4 v{vo}, {srd(sK if st == 0 else sV)}, s{sO2} offen offset:{jj*1024} {POL} lds")
        e(f"    s_add_u32 s{sLds}, s{sLds}, {SLOT}")
        e(f"    s_and_b32 s{sLds}, s{sLds}, {PB-1}")
        e(f"    s_add_u32 s{sPos}, s{sPos}, 1")
        mkoff()
        if XL == 2 and st == 0 and r0 <= PUB < r1:
            e(f"    s_cmp_lg_u32 s{sCnt}, s{sLin}")
            e("    s_cbranch_scc1 L_nopub")
            dbgaddr()
            e(f"    s_getreg_b32 s{sT1}, hwreg(HW_REG_XCC_ID, 0, 4)")
            e(f"    s_or_b32 s{sT1}, s{sT1}, 0x80")
            if not NOANN:
                e(f"    s_atomic_add s{sT1}, s[12:13], 0 glc")
            e("L_nopub:")
        if st == 1 and r1 == NR and XL != 2:
            assert r0 <= NR - TK and W == 1 and R0 >= 2
            e(f"    s_cmp_lg_u32 s{sCnt}, s{sLin}")
            e("    s_cbranch_scc1 L_notk")
            ticket()
            e("L_notk:")
        e(f"    s_add_u32 s{sCnt}, s{sCnt}, 1")
        e(f"    s_cmp_lt_u32 s{sCnt}, {r1}")
        e(f"    s_cbranch_scc1 L_load{si}")
        if XL == 1 and XP == 1 and si == 0:
            assert r1 <= 4
            announce()
    if XL != 2:
        e(f"    v_mov_b32 v11, {FLAG}")
        e("    s_waitcnt lgkmcnt(0)")
        if XL:
            e(f"    s_and_b32 s{sTk}, s{sTk}, 7")
        e(f"    v_mov_b32 v10, s{sTk}")
        e("    ds_write_b32 v11, v10")
    e(f"    s_waitcnt vmcnt({C}) lgkmcnt(0)")
    e("    s_barrier")
    e("    s_waitcnt vmcnt(0)")
    e("    s_barrier")
    if STAMP == 2:
        e("    s_mov_b32 m0, s67")
        lstamp("m0")
        e(f"    s_lshl_b32 s{sT0}, s{sG}, 16")
        e(f"    s_add_u32 s{sWS}, s14, s{sT0}")
        e(f"    s_addc_u32 s{sWS+1}, s15, 0")
        e(f"    s_mov_b32 s{sWS+2}, 0x10000")
        e(f"    s_mov_b32 s{sWS+3}, 0x20000")
        e(f"    s_lshl_b32 s{sT0}, s{sSp}, 14")
        e(f"    s_add_u32 s{sT0}, s{sT0}, 15360")
        e("    v_lshlrev_b32 v21, 2, v1")
        e(f"    buffer_store_dword v20, v21, {srd(sWS)}, s{sT0} offen")
    e("    s_endpgm")
    e("L_consumer:")
    nst = [0]
    def cstamp(idx, rnd=None):
        if STAMP != 3: return
        nst[0] += 1
        if rnd is not None:
            e(f"    s_cmp_lg_u32 s{sCnt}, {rnd}")
            e(f"    s_cbranch_scc1 L_cs{nst[0]}")
        e("    s_memrealtime s[64:65]")
        e("    s_waitcnt lgkmcnt(0)")
        e(f"    v_writelane_b32 v19, s64, {idx}")
        e(f"L_cs{nst[0]}:")
    vKA, vVA = 4, 8
    vM, vMs, vMx, vAl, vTmp, vWs, vWl, vOa = 10, 11, 12, 13, 14, 15, 16, 17
    vOne, vLa, vO, vQ = 20, 24, 28, 36
    vP = 52
    vF = vP + 24
    vS = vF + 32
    vX, vML = vS + 32, vS + 48
    vPW, vPR = 0, 3
    NP = 2 if LOOP else 3
    vAc = 18
    vTiny = 2
    sSent, sOk = 56, 57
    nv = vS + 4 * NR
    if LW == 0:
        e(f"    s_sub_u32 s{sW}, s{sW}, 1")
    e(f"    v_lshlrev_b32 v{vTmp}, 4, v2")
    e(f"    v_lshl_add_u32 v{vTmp}, v3, 8, v{vTmp}    ; Q: i*256 + g*16")
    e(f"    s_lshl_b32 s{sT1}, s{sG}, 12")
    e(f"    s_lshl_b32 s{sT0}, s{sG}, 16")
    e(f"    s_mov_b32 s{sQ+2}, 0x1000")
    e(f"    s_mov_b32 s{sQ+3}, 0x20000")
    e(f"    s_mov_b32 s{sWS+2}, 0x10000")
    e(f"    s_mov_b32 s{sWS+3}, 0x20000")
    e(f"    s_mov_b32 s{sOUT+2}, 0x1000")
    e(f"    s_mov_b32 s{sOUT+3}, 0x20000")
    e(f"    s_mul_i32 s{sT2}, s{sW}, 1536")
    e(f"    v_lshl_add_u32 v{vWs}, v1, 4, s{sT2}")
    e(f"    v_lshl_add_u32 v{vWl}, v1, 3, s{sT2}")
    e(f"    s_mov_b32 s{sSent}, 0x80008000")
    vSent = vF + 24 if XL else vF
    sD, sSh, sMode, sFar, sG4 = 16, 20, 21, 22, 23
    for j in range(4):
        e(f"    v_mov_b32 v{vSent+j}, s{sSent}")
    nsel = [0]
    def wstore(d4, d2, rb=False):
        def both(pol):
            so = sFar if XL == 2 and pol else sOff
            if d4 is not None:
                e(f"    buffer_store_dwordx4 {r4(d4)}, v{vWs}, {srd(sWS)}, s{so} offen {pol}")
            if d2 is not None:
                e(f"    buffer_store_dwordx2 {r2(d2)}, v{vWl}, {srd(sWS)}, s{so} offen offset:1024 {pol}")
                if XL == 2 and pol:
                    dbgaddr()
                    e(f"    s_lshl2_add_u32 s{sT1}, s{sSp}, s{sW}")
                    e(f"    s_lshl_b32 s{sT1}, 0x100, s{sT1}")
                    e("    s_waitcnt vmcnt(0)")
                    e(f"    s_atomic_add s{sT1}, s[12:13], 0 glc")
                    e("    s_waitcnt lgkmcnt(0)")
        if not XL:
            return both(SPOL)
        nsel[0] += 1
        e(f"    s_cmp_eq_u32 s{sMode}, {XF}" if XL == 1 else f"    s_cmp_eq_u32 s{sMode}, s{sSh}")
        e(f"    s_cbranch_scc1 L_near{nsel[0]}")
        both("sc1")
        e(f"    s_branch L_stored{nsel[0]}")
        e(f"L_near{nsel[0]}:")
        both("")
        if rb:
            e(f"    buffer_load_dwordx4 {r4(vF+16)}, v{vWs}, {srd(sWS)}, s{sOff} offen {'sc1' if rb == 1 else 'nt'}")
            e(f"    buffer_load_dwordx2 {r2(vF+20)}, v{vWl}, {srd(sWS)}, s{sOff} offen offset:1024 {'sc1' if rb == 1 else 'nt'}")
        e(f"L_stored{nsel[0]}:")
    e(f"    s_lshl_b32 s{sOff}, s{sSp}, 14")
    e("    s_waitcnt lgkmcnt(0)")
    e(f"    s_add_u32 s{sQ}, s4, s{sT1}")
    e(f"    s_addc_u32 s{sQ+1}, s5, 0")
    e(f"    s_add_u32 s{sWS}, s14, s{sT0}")
    e(f"    s_addc_u32 s{sWS+1}, s15, 0")
    e(f"    s_add_u32 s{sOUT}, s10, s{sT1}")
    e(f"    s_addc_u32 s{sOUT+1}, s11, 0")
    for s in range(4):
        e(f"    buffer_load_dwordx4 {r4(vQ+s*4)}, v{vTmp}, {srd(sQ)}, 0 offen offset:{s*64}")
    if XL:
        assert LOOP
        e(f"    s_mov_b32 s{sD}, s12")
        e(f"    s_mov_b32 s{sD+1}, s13")
        e(f"    s_mov_b32 s{sD+2}, 256")
        e(f"    s_mov_b32 s{sD+3}, 0x20000")
        if XL == 1:
            xshift(sSh)
        else:
            e(f"    s_getreg_b32 s{sSh}, hwreg(HW_REG_XCC_ID, 0, 4)")
            e(f"    s_or_b32 s{sSh}, s{sSh}, {0x80 if XF == 4 else 0xc0}")
            e(f"    s_add_u32 s{sFar}, s{sOff}, 8192")
        e(f"    s_lshl_b32 s{sG4}, s{sG}, 2")
        if ASK1:
            assert PUB >= 6
            e(f"    v_mov_b32 v{vF+22}, 0")
            e(f"    v_mov_b32 v{vF+23}, {FLAG}")
            e(f"    s_cmp_eq_u32 s{sW}, 0")
            e(f"    s_cselect_b32 s{sMode}, {16*I1}, -1")
            e(f"    s_cmp_eq_u32 s{sSp}, 3")
            e(f"    s_cselect_b32 s{sMode}, -1, s{sMode}")
    elif not NOSENT:
        wstore(vSent, vSent)
    e(f"    v_xor_b32 v{vMx}, v2, v3")
    e(f"    v_lshlrev_b32 v{vMx}, 4, v{vMx}")
    e(f"    v_lshl_add_u32 v{vKA}, v3, 8, v{vMx}")
    e(f"    s_lshl_b32 s{sT2}, s{sW}, 12")
    e(f"    v_add_u32 v{vKA}, s{sT2}, v{vKA}")
    for s in range(1, 4):
        e(f"    v_xor_b32 v{vKA+s}, {s*64}, v{vKA}")
    e(f"    v_lshrrev_b32 v{vMx}, 2, v1               ; key (0..15)")
    e(f"    v_bfe_u32 v{vAl}, v1, 1, 1")
    e(f"    s_lshl_b32 s{sT2}, s{sW}, 2")
    e(f"    v_or_b32 v{vAl}, s{sT2}, v{vAl}")
    e(f"    v_and_b32 v{vM}, 7, v{vMx}")
    e(f"    v_lshlrev_b32 v{vM}, 1, v{vM}")
    e(f"    v_xor_b32 v{vAl}, v{vAl}, v{vM}")
    e(f"    v_lshlrev_b32 v{vAl}, 4, v{vAl}")
    e(f"    v_lshl_add_u32 v{vAl}, v{vMx}, 8, v{vAl}")
    e(f"    v_and_b32 v{vM}, 1, v1")
    e(f"    v_lshl_add_u32 v{vVA}, v{vM}, 3, v{vAl}")
    e(f"    v_xor_b32 v{vVA+1}, 32, v{vVA}")
    e(f"    v_lshlrev_b32 v{vOa}, 8, v3")
    e(f"    v_lshl_add_u32 v{vOa}, v2, 3, v{vOa}")
    e(f"    s_lshl_b32 s{sT2}, s{sW}, 6")
    e(f"    v_add_u32 v{vOa}, s{sT2}, v{vOa}")
    c = (128 ** -0.5) * math.log2(math.e)
    e(f"    s_mov_b32 s{sC}, {hex(f2u(c))}      ; D^-0.5 * log2(e)")
    e(f"    s_mov_b32 s{sT2}, {PB}")
    e(f"    v_lshl_add_u32 v{vPR}, v1, 4, s{sT2}")
    e(f"    s_lshr_b32 s{sT0}, s{sW}, 1")
    e(f"    s_lshl_b32 s{sT0}, s{sT0}, 10")
    e(f"    s_and_b32 s{sT1}, s{sW}, 1")
    e(f"    s_lshl_b32 s{sT1}, s{sT1}, 3")
    e(f"    s_add_u32 s{sT0}, s{sT0}, s{sT1}")
    e(f"    v_add_u32 v{vPW}, s{sT0}, v{vPR}          ; P write: + (w>>1)*1024 + (w&1)*8")
    e(f"    s_mov_b32 s{sT2}, {MB}")
    e(f"    v_lshl_add_u32 v{vAc}, v1, 4, s{sT2}")
    e(f"    v_mov_b32 v{vTiny}, 0x00800000")
    e(f"    v_mov_b32 v{vM}, 0xff800000")
    for j in range(4):
        e(f"    v_mov_b32 v{vOne+j}, 0x3f803f80")
        e(f"    v_mov_b32 v{vLa+j}, 0")
    for j in range(8):
        e(f"    v_mov_b32 v{vO+j}, 0")
    for k in range(1, 4):
        e(f"    s_add_u32 s{sT0+k-1}, s{sSp}, {k}")
        e(f"    s_and_b32 s{sT0+k-1}, s{sT0+k-1}, 3")
        e(f"    s_lshl_b32 s{sT0+k-1}, s{sT0+k-1}, 14")
    if STAMP == 3:
        e("    v_mov_b32 v19, 0")
        e("    v_writelane_b32 v19, s60, 0")
    cstamp(1)
    e(f"    s_waitcnt vmcnt({0 if NOSENT or XL else 2})")
    if XL == 2 and MK == 0:
        e(f"    s_cmp_lg_u32 s{sSp}, 3")
        e("    s_cbranch_scc1 L_nomark")
        for k in range(3):
            e(f"    buffer_store_dwordx4 {r4(vSent)}, v{vWs}, {srd(sWS)}, s{sT0+k} offen")
            e(f"    buffer_store_dwordx2 {r2(vSent)}, v{vWl}, {srd(sWS)}, s{sT0+k} offen offset:1024")
        e("L_nomark:")
    cstamp(2)
    def vread(r, fb):
        for ks in range(2):
            for db in range(2):
                for tt in range(2):
                    e(f"    ds_read_b64_tr_b16 {r2(fb+ks*8+db*4+tt*2)}, v{vVA+db} offset:{(r%4)*SLOT+(2*ks+tt)*4096}")
        if r % 4 == 3:
            for db in range(2):
                e(f"    v_xor_b32 v{vVA+db}, {4*SLOT}, v{vVA+db}")
    def pvm(r, fb, ks):
        for db in range(2):
            e(f"    v_mfma_f32_16x16x32_bf16 {r4(vO+db*4)}, {r4(fb+ks*8+db*4)}, {r4(vP+(r%NP)*8+ks*4)}, {r4(vO+db*4)}")
    def pread(r):
        for ks in range(2):
            e(f"    ds_read_b128 {r4(vP+(r%NP)*8+ks*4)}, v{vPR} offset:{(r%4)*2048+ks*1024}")
    def lsum(r):
        for ks in range(2):
            e(f"    v_mfma_f32_16x16x32_bf16 {r4(vLa)}, {r4(vOne)}, {r4(vP+(r%NP)*8+ks*4)}, {r4(vLa)}")
    def pmake(rs):
        for r in rs:
            for j in range(4):
                e(f"    v_fma_f32 v{vS+4*r+j}, v{vS+4*r+j}, s{sC}, -v{vMs}")
        for r in rs:
            for j in range(4):
                e(f"    v_exp_f32 v{vS+4*r+j}, v{vS+4*r+j}")
        e("    s_nop 0")
        for r in rs:
            for u in range(2):
                e(f"    v_cvt_pk_bf16_f32 v{vS+4*r+u}, v{vS+4*r+2*u}, v{vS+4*r+2*u+1}")
            e(f"    ds_write_b64 v{vPW}, {r2(vS+4*r)} offset:{(r%4)*2048}")
    def pv():
        vread(NR - 1, vF)
        e("    s_waitcnt lgkmcnt(4)")
        pvm(NR - 1, vF, 0)
        e("    s_waitcnt lgkmcnt(0)")
        pvm(NR - 1, vF, 1)
    def polls(guard=False):
        for k in range(3):
            if guard:
                e(f"    s_cmp_eq_u64 s[{sMiss+2*k}:{sMiss+2*k+1}], 0")
                e(f"    s_cbranch_scc1 L_have{k}")
            e(f"    buffer_load_dwordx4 {r4(vX+k*4)}, v{vWs}, {srd(sWS)}, s{sT0+k} offen {LPOL}")
            e(f"    buffer_load_dwordx2 {r2(vML+k*2)}, v{vWl}, {srd(sWS)}, s{sT0+k} offen offset:1024 {LPOL}")
            if guard:
                e(f"L_have{k}:")
    sMiss = 66
    def smax(r):
        e(f"    v_max3_f32 v{vM}, v{vS+4*r}, v{vS+4*r+1}, v{vM}")
        e(f"    v_max3_f32 v{vM}, v{vS+4*r+2}, v{vS+4*r+3}, v{vM}")
    if LOOP:
        vT = vP
        def keep(t, dst):
            e(f"    v_max3_f32 v{vM}, v{t}, v{t+1}, v{vM}")
            e(f"    v_max3_f32 v{vM}, v{t+2}, v{t+3}, v{vM}")
            e(f"    s_set_gpr_idx_on s{sCnt}, gpr_idx(DST)")
            e("    s_nop 0")
            for j in range(4):
                e(f"    v_mov_b32 v{dst+j}, v{t+j}")
            e("    s_set_gpr_idx_off")
        for j in range(4):
            e(f"    v_mov_b32 v{vT+4+j}, v{vM}")
        e(f"    s_mov_b32 s{sCnt}, 0")
        e("L_pass1:")
        for u in range(4):
            e("    s_barrier")
            for q in range(4):
                e(f"    ds_read_b128 {r4(vF+q*4)}, v{vKA+q} offset:{u*SLOT}")
            if u == 3:
                for q in range(4):
                    e(f"    v_xor_b32 v{vKA+q}, {4*SLOT}, v{vKA+q}")
            for q in range(4):
                e(f"    s_waitcnt lgkmcnt({3-q})")
                e(f"    v_mfma_f32_16x16x32_bf16 {r4(vT+4*(u%2))}, {r4(vF+q*4)}, {r4(vQ+q*4)}, {'0' if q == 0 else r4(vT+4*(u%2))}")
            keep(vT + 4*((u+1) % 2), vS + 4*(u-1))
        e(f"    s_add_u32 s{sCnt}, s{sCnt}, 16")
        if XL:
            e(f"    s_cmp_lg_u32 s{sCnt}, s{sMode}" if ASK1 else f"    s_cmp_lg_u32 s{sCnt}, {16*I1}")
            e("    s_cbranch_scc1 L_noask")
            e(f"    v_mov_b32 v{vF+22}, {'0x49249240' if XL == 1 else 's%d' % sSh}" if NOASK else f"    buffer_load_dword v{vF+22}, off, {srd(sD)}, s{sG4} sc1")
            e("L_noask:")
        if XL == 1:
            e(f"    s_cmp_lg_u32 s{sCnt}, {16*I2}")
            e("    s_cbranch_scc1 L_nomark")
            e("    s_waitcnt vmcnt(0)")
            e(f"    v_readfirstlane_b32 s{sMode}, v{vF+22}")
            e("    s_nop 0")
            e(f"    s_lshr_b32 s{sMode}, s{sMode}, s{sSh}")
            e(f"    s_and_b32 s{sMode}, s{sMode}, 7")
            wstore(vSent, vSent, RB)
            e("L_nomark:")
        if XL == 2:
            assert PUB >= 4 * WT + 2 and (MK == 0 or WT > MK + 2)
            if MK:
                e(f"    s_cmp_lg_u32 s{sSp}, 3")
                e("    s_cbranch_scc1 L_nowait")
                e(f"    s_sub_u32 s{sFar}, s{sCnt}, {16*MK}")
                e(f"    s_cmp_ge_u32 s{sFar}, 48")
                e("    s_cbranch_scc1 L_nomark")
                e(f"    s_lshl_b32 s{sFar}, s{sFar}, 10")
                e(f"    buffer_store_dwordx4 {r4(vSent)}, v{vWs}, {srd(sWS)}, s{sFar} offen")
                e(f"    buffer_store_dwordx2 {r2(vSent)}, v{vWl}, {srd(sWS)}, s{sFar} offen offset:1024")
                e("L_nomark:")
            e(f"    s_cmp_lg_u32 s{sCnt}, {16*WT}")
            e("    s_cbranch_scc1 L_nowait")
            e("    s_waitcnt vmcnt(0)")
            e("L_nowait:")
        e(f"    s_cmp_lt_u32 s{sCnt}, {4*NR}")
        e("    s_cbranch_scc1 L_pass1")
        e("    s_waitcnt vmcnt(0)")
        if ASK1:
            e(f"    s_cmp_lg_u32 s{sW}, 0")
            e("    s_cbranch_scc1 L_noshare")
            e(f"    ds_write_b32 v{vF+23}, v{vF+22}")
            e("L_noshare:")
        elif XL == 2:
            e(f"    v_readfirstlane_b32 s{sMode}, v{vF+22}")
        for j in range(4):
            e(f"    v_mov_b32 v{vS+4*(NR-1)+j}, v{vT+4+j}")
        if XL == 2 and not ASK1:
            e(f"    s_and_b32 s{sMode}, s{sMode}, 0xff")
        e(f"    s_lshl_b32 s{sCnt}, s{sW}, 2")
        e(f"    v_add_u32 v{vMx}, s{sCnt}, v{vAc}")
        smax(NR - 1)
    else:
        for r in range(NR):
            if r == LATE:
                e("    s_waitcnt vmcnt(0)")
            e("    s_barrier")
            for q in range(4):
                e(f"    ds_read_b128 {r4(vF+q*4)}, v{vKA+q} offset:{(r%4)*SLOT}")
            if r % 4 == 3:
                for q in range(4):
                    e(f"    v_xor_b32 v{vKA+q}, {4*SLOT}, v{vKA+q}")
            for q in range(4):
                e(f"    s_waitcnt lgkmcnt({3-q})")
                e(f"    v_mfma_f32_16x16x32_bf16 {r4(vS+4*r)}, {r4(vF+q*4)}, {r4(vQ+q*4)}, {'0' if q == 0 else r4(vS+4*r)}")
            if r:
                smax(r - 1)
        e(f"    s_lshl_b32 s{sCnt}, s{sW}, 2")
        e(f"    v_add_u32 v{vMx}, s{sCnt}, v{vAc}")
        e("    s_nop 3")
        smax(NR - 1)
    for sw in ("32", "16"):
        e(f"    v_mov_b32 v{vTmp}, v{vM}")
        e("    s_nop 1")
        e(f"    v_permlane{sw}_swap_b32 v{vTmp}, v{vM}")
        e("    s_nop 1")
        e(f"    v_max_f32 v{vM}, v{vTmp}, v{vM}")
    e(f"    ds_write_b32 v{vMx}, v{vM}")
    e("    s_waitcnt lgkmcnt(0)")
    e("    s_barrier")
    e(f"    ds_read_b128 {r4(vF)}, v{vAc}")
    if ASK1:
        e(f"    ds_read_u8 v{vF+22}, v{vF+23}")
    e("    s_waitcnt lgkmcnt(0)")
    if ASK1:
        e(f"    v_readfirstlane_b32 s{sMode}, v{vF+22}")
    e(f"    v_max3_f32 v{vM}, v{vF}, v{vF+1}, v{vF+2}")
    e(f"    v_max_f32 v{vM}, v{vM}, v{vF+3}")
    e(f"    v_mul_f32 v{vMs}, s{sC}, v{vM}")
    pmake([0, 1, 2])
    e("    s_waitcnt lgkmcnt(0)")
    e("    s_barrier")
    if LOOP:
        pread(0); pread(1)
        vread(0, vF)
        e("    s_waitcnt lgkmcnt(8)")
        lsum(0); lsum(1)
        e("    s_waitcnt lgkmcnt(0)")
        vread(1, vF + 16)
        pvm(0, vF, 0); pvm(0, vF, 1)
        pmake([3])
        pread(2)
        e("    s_waitcnt lgkmcnt(3)")
        pvm(1, vF + 16, 0); pvm(1, vF + 16, 1)
        e("    s_waitcnt lgkmcnt(0)")
        lsum(2)
        vPT = vP + 16
        e(f"    s_mov_b32 s{sCnt}, 0")
        e("L_pass2:")
        for r in range(2, 6):
            e("    s_barrier")
            vread(r, vF)
            pread(r + 1)
            e(f"    s_set_gpr_idx_on s{sCnt}, gpr_idx(SRC0)")
            e("    s_nop 0")
            for j in range(4):
                e(f"    v_fma_f32 v{vPT+j}, v{vS+4*(r+2)+j}, s{sC}, -v{vMs}")
            e("    s_set_gpr_idx_off")
            for j in range(4):
                e(f"    v_exp_f32 v{vPT+j}, v{vPT+j}")
            e("    s_nop 0")
            for u in range(2):
                e(f"    v_cvt_pk_bf16_f32 v{vPT+u}, v{vPT+2*u}, v{vPT+2*u+1}")
            e(f"    ds_write_b64 v{vPW}, {r2(vPT)} offset:{((r+2)%4)*2048}")
            e("    s_waitcnt lgkmcnt(7)")
            pvm(r, vF, 0)
            e("    s_waitcnt lgkmcnt(3)")
            pvm(r, vF, 1)
            e("    s_waitcnt lgkmcnt(0)")
            lsum(r + 1)
        e(f"    s_add_u32 s{sCnt}, s{sCnt}, 16")
        e(f"    s_cmp_lt_u32 s{sCnt}, {4*(NR-4)}")
        e("    s_cbranch_scc1 L_pass2")
    else:
        pread(0); pread(1); pread(2)
        vread(0, vF)
        e("    s_waitcnt lgkmcnt(8)")
        lsum(0); lsum(1); lsum(2)
        e("    s_waitcnt lgkmcnt(0)")
        vread(1, vF + 16)
        pvm(0, vF, 0); pvm(0, vF, 1)
        pmake([3])
        e("    s_waitcnt lgkmcnt(0)")
        pvm(1, vF + 16, 0); pvm(1, vF + 16, 1)
    for r in range(NR - 2 if LOOP else 2, NR - 1):
        if r == NR - 2 and XL != 2:
            e(f"    v_mov_b32 v{vTmp}, {FLAG}")
        e("    s_barrier")
        if r == NR - 2 and XL != 2:
            e(f"    ds_read_b32 v{vTmp}, v{vTmp}")
        vread(r, vF)
        pread(r + 1)
        wr = r + 2 < NR
        if wr:
            pmake([r + 2])
        e(f"    s_waitcnt lgkmcnt({6 + wr})")
        pvm(r, vF, 0)
        e(f"    s_waitcnt lgkmcnt({2 + wr})")
        pvm(r, vF, 1)
        e("    s_waitcnt lgkmcnt(0)")
        lsum(r + 1)
    e(f"    s_mov_b32 s{sTk}, s{sSp}" if XL == 2 else f"    v_readfirstlane_b32 s{sTk}, v{vTmp}")
    e("    s_nop 6")
    e(f"    v_log_f32 v{vAl}, v{vLa}")
    e(f"    v_rcp_f32 v{vLa}, v{vLa}                 ; 1/l")
    e(f"    s_add_u32 s{sOk}, s{sSent}, 0x8000")
    e(f"    v_add_f32 v{vAl}, v{vMs}, v{vAl}")
    cstamp(12)
    e(f"    s_cmp_eq_u32 s{sTk}, {7 if NOGA else 3}")
    e("    s_cbranch_scc1 L_gather")
    e("    s_barrier")
    cstamp(13)
    if STAMP:
        e("    s_memrealtime s[62:63]")
        e("    s_waitcnt lgkmcnt(0)")
    pv()
    cstamp(14)
    if NOST:
        e("    s_branch L_fin")
    e(f"    v_max_i32 v{vAl}, s{sOk}, v{vAl}")
    e(f"    v_mul_f32 v{vLa}, {hex(f2u(1.0/32767.0))}, v{vLa}")
    e("    s_nop 4")
    e(f"    v_max3_f32 v{vMx}, abs(v{vO}), abs(v{vO+1}), abs(v{vO+2})")
    e(f"    v_max3_f32 v{vTmp}, abs(v{vO+4}), abs(v{vO+5}), abs(v{vO+6})")
    e(f"    v_max3_f32 v{vMx}, abs(v{vO+3}), abs(v{vO+7}), v{vMx}")
    e(f"    v_max3_f32 v{vMx}, v{vMx}, v{vTmp}, v{vTiny}")
    e(f"    v_rcp_f32 v{vTmp}, v{vMx}")
    e("    s_nop 0")
    for j in range(8):
        e(f"    v_mul_f32 v{vS+j}, v{vTmp}, v{vO+j}")
    for j in range(4):
        e(f"    v_cvt_pknorm_i16_f32 v{vOne+j}, v{vS+2*j}, v{vS+2*j+1}")
    wstore(vOne, None)
    e(f"    v_add_f32 v{vM}, v{vS}, v{vS+1}")
    e(f"    v_add_f32 v{vTmp}, v{vS+2}, v{vS+3}")
    for j in range(2):
        e(f"    v_add_f32 v{vM}, v{vM}, v{vS+4+2*j}")
        e(f"    v_add_f32 v{vTmp}, v{vTmp}, v{vS+5+2*j}")
    e(f"    v_mul_f32 v{vMx}, v{vMx}, v{vLa}          ; scale / (32767 l)")
    e(f"    v_add_f32 v{vM}, v{vM}, v{vTmp}")
    e(f"    v_fma_f32 v{vMx}, v{vM}, 0, v{vMx}")
    e(f"    v_max_i32 v{vMx}, s{sOk}, v{vMx}")
    wstore(None, vMx)
    e("    s_branch L_fin")
    e("L_gather:")
    e(f"    s_mov_b32 s{sCnt}, {hex(PMAX)}")
    if PRE == 1:
        polls()
    e("    s_barrier")
    cstamp(13)
    if STAMP:
        e("    s_memrealtime s[62:63]")
        e("    s_waitcnt lgkmcnt(0)")
    if PRE == 2:
        polls()
    pv()
    cstamp(14)
    if PRE:
        e("    s_branch L_check")
    e("L_poll:")
    if XL == 2:
        e(f"    s_and_b32 s{sMode}, s{sCnt}, 15")
        e("    s_cbranch_scc1 L_poll2")
        e(f"    buffer_load_dword v{vTmp}, off, {srd(sD)}, s{sG4} sc1")
        e(f"    s_add_u32 s{sSh}, s{sW}, 8")
        e("    s_waitcnt vmcnt(0)")
        e(f"    v_readfirstlane_b32 s{sMode}, v{vTmp}")
        e("    s_nop 0")
        e(f"    s_lshr_b32 s{sMode}, s{sMode}, s{sSh}")
        e(f"    s_and_b32 s{sMode}, s{sMode}, 0x111")
        e("    s_cbranch_scc0 L_poll2")
        for k in range(3):
            e(f"    s_bfe_u32 s{sSh}, s{sMode}, {hex(0x10000 + 4*k)}")
            e(f"    s_lshl_b32 s{sSh}, s{sSh}, 13")
            e(f"    s_or_b32 s{sT0+k}, s{sT0+k}, s{sSh}")
        e("    buffer_inv sc1")
        e("    s_waitcnt vmcnt(0)")
        e("L_poll2:")
    polls(bool(PRE))
    e("L_check:")
    e(f"    s_sub_u32 s{sCnt}, s{sCnt}, 1")
    e("    s_cbranch_scc1 L_fin")
    e("    s_waitcnt vmcnt(0)")
    for k in range(3):
        e(f"    v_min3_i32 v{vS+k}, v{vX+4*k}, v{vX+4*k+1}, v{vX+4*k+2}")
        e(f"    v_min3_i32 v{vS+4+k}, v{vX+4*k+3}, v{vML+2*k}, v{vML+2*k+1}")
    for k in range(3):
        e(f"    v_min_i32 v{vS+k}, v{vS+k}, v{vS+4+k}")
    for k in range(3):
        e(f"    v_cmp_eq_u32 s[{sMiss+2*k}:{sMiss+2*k+1}], s{sSent}, v{vS+k}")
    e(f"    v_max3_f32 v{vM}, v{vML+1}, v{vML+3}, v{vML+5}")
    e(f"    v_max_f32 v{vM}, v{vM}, v{vAl}")
    e(f"    s_or_b64 vcc, s[{sMiss}:{sMiss+1}], s[{sMiss+2}:{sMiss+3}]")
    e(f"    s_or_b64 vcc, vcc, s[{sMiss+4}:{sMiss+5}]")
    if not NOCHK:
        e("    s_cbranch_scc1 L_poll")
    e(f"    v_sub_f32 v{vAl}, v{vAl}, v{vM}")
    for k in range(3):
        e(f"    v_sub_f32 v{vML+2*k+1}, v{vML+2*k+1}, v{vM}")
    e(f"    v_exp_f32 v{vAl}, v{vAl}")
    for k in range(3):
        e(f"    v_exp_f32 v{vML+2*k+1}, v{vML+2*k+1}")
    vU = vS
    for k in range(3):
        for j in range(4):
            for h in range(2):
                e(f"    v_cvt_f32_i32_sdwa v{vU+k*8+2*j+h}, sext(v{vX+4*k+j}) dst_sel:DWORD dst_unused:UNUSED_PAD src0_sel:WORD_{h}")
        if k == 0:
            e(f"    v_add_f32 v{vM}, v{vAl}, v{vML+1}")
            e(f"    v_add_f32 v{vTmp}, v{vML+3}, v{vML+5}")
            e(f"    v_add_f32 v{vM}, v{vM}, v{vTmp}")
            e(f"    v_rcp_f32 v{vM}, v{vM}")
            e(f"    v_mul_f32 v{vAl}, v{vAl}, v{vLa}")
            for kk in range(3):
                e(f"    v_mul_f32 v{vML+2*kk}, v{vML+2*kk}, v{vML+2*kk+1}")
    for j in range(8):
        e(f"    v_mul_f32 v{vO+j}, v{vAl}, v{vO+j}")
    for k in range(3):
        for j in range(8):
            e(f"    v_fmac_f32 v{vO+j}, v{vML+2*k}, v{vU+k*8+j}")
    for j in range(8):
        e(f"    v_mul_f32 v{vO+j}, v{vM}, v{vO+j}")
    for j in range(4):
        e(f"    v_cvt_pk_bf16_f32 v{vOne+j}, v{vO+2*j}, v{vO+2*j+1}")
    e(f"    buffer_store_dwordx2 {r2(vOne)}, v{vOa}, {srd(sOUT)}, 0 offen {OPOL}")
    e(f"    buffer_store_dwordx2 {r2(vOne+2)}, v{vOa}, {srd(sOUT)}, 0 offen offset:32 {OPOL}")
    e("L_fin:")
    cstamp(15)
    if STAMP == 3:
        e("    s_waitcnt vmcnt(0)")
        cstamp(16)
        e(f"    s_cmp_lg_u32 s{sW}, 0")
        e("    s_cbranch_scc1 L_end")
        e(f"    s_add_u32 s{sT0}, s{sOff}, 15360")
        e("    v_lshlrev_b32 v21, 2, v1")
        e(f"    buffer_store_dword v19, v21, {srd(sWS)}, s{sT0} offen")
    if STAMP:
        e("    s_waitcnt vmcnt(0)")
        e("    s_memrealtime s[64:65]")
        e(f"    s_cmp_lg_u32 s{sW}, 0")
        e("    s_cbranch_scc1 L_end")
        e("    s_waitcnt lgkmcnt(0)")
        e("    s_mov_b64 exec, 1")
        e("    v_mov_b32 v20, s60")
        e("    v_mov_b32 v21, s62")
        e("    v_mov_b32 v22, s64")
        e("    s_getreg_b32 s58, hwreg(HW_REG_XCC_ID)")
        e("    v_mov_b32 v23, s58")
        e(f"    v_mov_b32 v{vTmp}, 16320")
        e(f"    buffer_store_dwordx4 v[20:23], v{vTmp}, {srd(sWS)}, s{sOff} offen")
    e("L_end:")
    e("    s_endpgm")
    e('.section .rodata,"a"')
    e(".p2align 6")
    e(f".amdhsa_kernel {NAME}_kernel")
    e(f"  .amdhsa_next_free_vgpr {nv}")
    e("  .amdhsa_next_free_sgpr 72")
    e(f"  .amdhsa_accum_offset {(nv+3)//4*4}")
    e("  .amdhsa_group_segment_fixed_size 0")
    e("  .amdhsa_kernarg_size 48")
    e("  .amdhsa_user_sgpr_count 2")
    e("  .amdhsa_user_sgpr_kernarg_segment_ptr 1")
    e("  .amdhsa_system_sgpr_workgroup_id_x 1")
    e(".end_amdhsa_kernel")
    return "\n".join(L) + "\n"

if __name__ == "__main__":
    kw = {}
    for a in sys.argv[2:]:
        k, v = a.split("=")
        kw[k] = v.replace("_", " ") if "POL" in k or k == "SCH" else int(v)
    open(sys.argv[1], "w").write(gen(**kw))
```

```python
import sys, math
from gen import HEADER, NAME, f2u

def gen(C=16, N=20, GI=4, WGMAP=1, POL="nt", STAMP=0, TK=2, PRIO=1, LW=0, NOSW=0, NOC=0, W=1, ROT=0, NOSENT=0, NOTK=0, OPOL="", LATE=4, PRE=1, N2=0, SPOL="sc1", LPOL="sc1", NOST=0, NOCHK=0, NOGA=0, ROT2=0, ROTS=0, A=0, RX=0, N3=0, R3=4, N0=0, R0=4, QB=12, ORD=0, GG=0, SCH='', LOOP=0, XL=0, XP=1, I1=3, I2=5, RB=1, XF=4, NOASK=0, NOANN=0, PMAX=0x40000, ANN3=0, ASK1=0, PUB=7, MK=0, WT=1, WARM=0, FILL=0, FPOL='', CP=0):
    L = []
    e = L.append
    NR = 512 // C
    NT = C // 4
    SLOT = C * 1024
    assert C == 16 and C < N <= 2 * C
    PB = 8 * SLOT
    MB = PB + 8192
    FLAG = MB + 1024
    lds = FLAG + 64
    srd = lambda x: f"s[{x}:{x+3}]"
    r4 = lambda x: f"v[{x}:{x+3}]"
    r2 = lambda x: f"v[{x}:{x+1}]"
    sK, sV, sQ, sWS, sOUT = 16, 20, 24, 28, 32
    sW, sG, sSp, sCnt, sOff, sO2, sC, sLds, sT0, sT1, sT2, sLin, sTk = 40, 41, 42, 43, 44, 45, 46, 47, 48, 49, 50, 51, 52
    e(HEADER + f"; @launch grid=(256,1,1) block=(320,1,1) lds={lds}")
    e('.amdgcn_target "amdgcn-amd-amdhsa--gfx950"')
    e(".text")
    e(f".globl {NAME}_kernel")
    e(".p2align 8")
    e(f".type {NAME}_kernel,@function")
    e(f"{NAME}_kernel:")
    e("    s_cmp_ge_u32 s2, 256")
    e("    s_cbranch_scc1 L_end")
    e("    s_load_dwordx4 s[4:7], s[0:1], 0")
    e("    s_load_dwordx4 s[8:11], s[0:1], 16")
    e("    s_load_dwordx4 s[12:15], s[0:1], 32")
    if STAMP:
        e("    s_memrealtime s[60:61]")
    e("    v_lshrrev_b32 v2, 6, v0")
    e("    v_and_b32 v1, 63, v0                 ; lane")
    e(f"    v_readfirstlane_b32 s{sW}, v2")
    if WGMAP == 0:
        e(f"    s_lshr_b32 s{sG}, s2, 2")
        e(f"    s_and_b32 s{sSp}, s2, 3")
    elif WGMAP == 1:
        e(f"    s_and_b32 s{sG}, s2, 63")
        e(f"    s_lshr_b32 s{sSp}, s2, 6")
    elif WGMAP == 2:
        e(f"    s_and_b32 s{sG}, s2, 7")
        e(f"    s_lshr_b32 s{sT0}, s2, 5")
        e(f"    s_lshl_b32 s{sG}, s{sG}, 3")
        e(f"    s_or_b32 s{sG}, s{sG}, s{sT0}")
        e(f"    s_bfe_u32 s{sSp}, s2, 0x20003")
    elif WGMAP == 3:
        e(f"    s_lshr_b32 s{sT0}, s2, 1")
        e(f"    s_xor_b32 s{sT0}, s{sT0}, s2")
        e(f"    s_and_b32 s{sT0}, s{sT0}, 1")
        e(f"    s_lshr_b32 s{sG}, s2, 3")
        e(f"    s_lshl_b32 s{sG}, s{sG}, 1")
        e(f"    s_or_b32 s{sG}, s{sG}, s{sT0}")
        e(f"    s_bfe_u32 s{sSp}, s2, 0x20001")
    e("    v_lshrrev_b32 v2, 4, v1              ; g = lane>>4")
    e("    v_and_b32 v3, 15, v1                 ; i = lane&15")
    e(f"    s_cmp_lg_u32 s{sW}, {LW}")
    e("    s_cbranch_scc1 L_consumer")
    vKo, vVo = 4, 8
    e("    v_xor_b32 v10, v3, v2")
    e("    v_lshlrev_b32 v10, 4, v10")
    e(f"    v_lshl_add_u32 v{vKo}, v2, 8, v10")
    e(f"    s_lshl_b32 s{sT0}, s{sG}, 21")
    if GG:
        e(f"    s_and_b32 s{sT0}, s{sT0}, {hex(0xffffffff ^ ((1 << (21+GG)) - 1))}")
    e(f"    s_mov_b32 s{sK+2}, {hex(0x200000 << GG)}")
    e(f"    s_mov_b32 s{sK+3}, 0x20000")
    sPos, sBase = 55, 53
    e(f"    s_lshl_b32 s{sBase}, s{sSp}, {14+A}")
    if GG:
        e(f"    s_and_b32 s{sT1}, s{sG}, {(1 << GG) - 1}")
        e(f"    s_lshl_b32 s{sT1}, s{sT1}, 16")
        e(f"    s_or_b32 s{sBase}, s{sBase}, s{sT1}")
    def mkoff():
        e(f"    s_and_b32 s{sPos}, s{sPos}, {NR-1}")
        if A == 0:
            e(f"    s_lshl_b32 s{sOff}, s{sPos}, {16+GG}")
        else:
            e(f"    s_lshr_b32 s{sOff}, s{sPos}, {A}")
            e(f"    s_lshl_b32 s{sOff}, s{sOff}, {16+A}")
            e(f"    s_and_b32 s{sO2}, s{sPos}, {(1<<A)-1}")
            e(f"    s_lshl_b32 s{sO2}, s{sO2}, 14")
            e(f"    s_or_b32 s{sOff}, s{sOff}, s{sO2}")
        e(f"    s_or_b32 s{sOff}, s{sOff}, s{sBase}")
        if QB > 12:
            e(f"    s_and_b32 s{sO2}, s{sOff}, {(1 << (QB+2)) - 1}")
            e(f"    s_xor_b32 s{sOff}, s{sOff}, s{sO2}")
            e(f"    s_lshr_b32 s{sO2}, s{sO2}, 2")
            e(f"    s_or_b32 s{sOff}, s{sOff}, s{sO2}")
    for j in range(1, 4):
        e(f"    v_xor_b32 v{vKo+j}, {j*64}, v{vKo}")
    e("    v_lshlrev_b32 v10, 1, v2")
    e("    v_xor_b32 v10, v3, v10")
    e("    v_lshlrev_b32 v10, 4, v10")
    e(f"    v_lshl_add_u32 v{vVo}, v2, 8, v10")
    e(f"    v_xor_b32 v{vVo+1}, 128, v{vVo}")
    e(f"    s_mov_b32 s{sV+2}, {hex(0x200000 << GG)}")
    e(f"    s_mov_b32 s{sV+3}, 0x20000")
    e(f"    s_mul_i32 s{sPos}, s{sG}, {ROT}")
    if GG:
        e(f"    s_lshr_b32 s{sPos}, s{sG}, {GG}")
        e(f"    s_mul_i32 s{sPos}, s{sPos}, {ROT}")
    if ROTS:
        e(f"    s_lshr_b32 s{sPos}, s{sPos}, {ROTS}")
    if RX:
        e(f"    s_lshr_b32 s{sT2}, s{sG}, 5")
        e(f"    s_mul_i32 s{sT2}, s{sT2}, {RX}")
        e(f"    s_add_u32 s{sPos}, s{sPos}, s{sT2}")
    if ROT2:
        e(f"    s_mul_i32 s{sT2}, s{sSp}, {ROT2}")
        e(f"    s_add_u32 s{sPos}, s{sPos}, s{sT2}")
    mkoff()
    if XL == 2:
        e(f"    s_cmp_eq_u32 s{sSp}, 3")
        e(f"    s_cselect_b32 s{sLin}, {PUB}, -1")
    else:
        e(f"    s_mov_b32 s{sLin}, {NR-TK}")
    e(f"    s_mov_b32 s{sLds}, 0")
    if NOSW:
        for j in range(6):
            e(f"    v_lshlrev_b32 v{vKo+j}, 4, v1")
    if PRIO:
        e(f"    s_setprio {PRIO}")
    e("    s_waitcnt lgkmcnt(0)")
    e(f"    s_add_u32 s{sK}, s6, s{sT0}")
    e(f"    s_addc_u32 s{sK+1}, s7, 0")
    e(f"    s_add_u32 s{sV}, s8, s{sT0}")
    e(f"    s_addc_u32 s{sV+1}, s9, 0")
    def lstamp(idx):
        if STAMP == 2:
            e("    s_memrealtime s[62:63]")
            e("    s_waitcnt lgkmcnt(0)")
            e(f"    v_writelane_b32 v20, s62, {idx}")
    if STAMP == 2:
        e("    v_mov_b32 v20, 0")
        e("    v_writelane_b32 v20, s60, 0")
        e("    s_mov_b32 s67, 4")
    lstamp(1)
    def dbgaddr():
        e(f"    s_lshl_b32 s{sT0}, s{sG}, 2")
        e(f"    s_add_u32 s12, s12, s{sT0}")
        e(f"    s_addc_u32 s13, s13, 0")
    def xshift(d):
        e(f"    s_getreg_b32 s{d}, hwreg(HW_REG_XCC_ID, 0, 3)")
        e(f"    s_mul_i32 s{d}, s{d}, 3")
        e(f"    s_add_u32 s{d}, s{d}, 4")
    def announce():
        dbgaddr()
        xshift(sT1)
        e(f"    s_lshl_b32 s{sT1}, 1, s{sT1}")
        if ANN3:
            e(f"    s_cmp_lg_u32 s{sSp}, 3")
            e("    s_cbranch_scc1 L_noann")
        if not NOANN:
            e(f"    s_atomic_add s{sT1}, s[12:13], 0 glc")
        e("L_noann:")
    if XL == 1 and XP == 0:
        announce()
    def ticket():
        if not XL:
            dbgaddr()
        e(f"    s_mov_b32 s{sTk}, 1")
        if NOTK:
            e(f"    s_mov_b32 s{sTk}, s{sSp}")
        else:
            e(f"    s_atomic_add s{sTk}, s[12:13], 0 glc")
    stages = ([(0, N0, 0, R0), (0, N, R0, NR)] if N0 else [(0, N, 0, NR)]) + ([(1, N2 or N, 0, NR - R3), (1, N3, NR - R3, NR)] if N3 else [(1, N2 or N, 0, NR)])
    if SCH:
        stages = []
        for st, part in enumerate(SCH.split("/")):
            r0 = 0
            for x in part.split(","):
                cnt, n = map(int, x.split("x"))
                assert 1 <= n <= 32
                stages.append((st, n, r0, r0 + cnt)); r0 += cnt
            assert r0 == NR
        assert stages[0][3] >= 2
    for si, (st, n, r0, r1) in enumerate(stages):
        if r0 == 0:
            e(f"    s_mov_b32 s{sCnt}, 0")
        e(f"L_load{si}:")
        for j in range(C):
            q, jj = (j % 4, j // 4) if ORD else (j // 4, j % 4)
            if ORD or jj == 0:
                e(f"    s_add_u32 m0, s{sLds}, {q*4096}")
                e(f"    s_add_u32 s{sO2}, s{sOff}, {q << QB}")
            e(f"    s_waitcnt vmcnt({n-1})")
            if j == max(0, n - 1 - C):
                if si == 0:
                    e(f"    s_cmp_lt_u32 s{sCnt}, 2")
                    e("    s_cbranch_scc1 L_nobar")
                e("    s_barrier")
                if si == 0:
                    e("L_nobar:")
            vo = vKo + jj if st == 0 else vVo + (jj % 2)
            e(f"    buffer_load_dwordx4 v{vo}, {srd(sK if st == 0 else sV)}, s{sO2} offen offset:{jj*1024} {POL} lds")
        e(f"    s_add_u32 s{sLds}, s{sLds}, {SLOT}")
        e(f"    s_and_b32 s{sLds}, s{sLds}, {PB-1}")
        e(f"    s_add_u32 s{sPos}, s{sPos}, 1")
        mkoff()
        if XL == 2 and st == 0 and r0 <= PUB < r1:
            e(f"    s_cmp_lg_u32 s{sCnt}, s{sLin}")
            e("    s_cbranch_scc1 L_nopub")
            dbgaddr()
            e(f"    s_getreg_b32 s{sT1}, hwreg(HW_REG_XCC_ID, 0, 4)")
            e(f"    s_or_b32 s{sT1}, s{sT1}, 0x80")
            if not NOANN:
                e(f"    s_atomic_add s{sT1}, s[12:13], 0 glc")
            e("L_nopub:")
        if st == 1 and r1 == NR and XL != 2:
            assert r0 <= NR - TK and W == 1 and R0 >= 2
            e(f"    s_cmp_lg_u32 s{sCnt}, s{sLin}")
            e("    s_cbranch_scc1 L_notk")
            ticket()
            e("L_notk:")
        e(f"    s_add_u32 s{sCnt}, s{sCnt}, 1")
        e(f"    s_cmp_lt_u32 s{sCnt}, {r1}")
        e(f"    s_cbranch_scc1 L_load{si}")
        if XL == 1 and XP == 1 and si == 0:
            assert r1 <= 4
            announce()
    if XL != 2:
        e(f"    v_mov_b32 v11, {FLAG}")
        e("    s_waitcnt lgkmcnt(0)")
        if XL:
            e(f"    s_and_b32 s{sTk}, s{sTk}, 7")
        e(f"    v_mov_b32 v10, s{sTk}")
        e("    ds_write_b32 v11, v10")
    e(f"    s_waitcnt vmcnt({C}) lgkmcnt(0)")
    e("    s_barrier")
    e("    s_waitcnt vmcnt(0)")
    e("    s_barrier")
    if STAMP == 2:
        e("    s_mov_b32 m0, s67")
        lstamp("m0")
        e(f"    s_lshl_b32 s{sT0}, s{sG}, 16")
        e(f"    s_add_u32 s{sWS}, s14, s{sT0}")
        e(f"    s_addc_u32 s{sWS+1}, s15, 0")
        e(f"    s_mov_b32 s{sWS+2}, 0x10000")
        e(f"    s_mov_b32 s{sWS+3}, 0x20000")
        e(f"    s_lshl_b32 s{sT0}, s{sSp}, 14")
        e(f"    s_add_u32 s{sT0}, s{sT0}, 15360")
        e("    v_lshlrev_b32 v21, 2, v1")
        e(f"    buffer_store_dword v20, v21, {srd(sWS)}, s{sT0} offen")
    e("    s_endpgm")
    e("L_consumer:")
    nst = [0]
    def cstamp(idx, rnd=None):
        if STAMP != 3: return
        nst[0] += 1
        if rnd is not None:
            e(f"    s_cmp_lg_u32 s{sCnt}, {rnd}")
            e(f"    s_cbranch_scc1 L_cs{nst[0]}")
        e("    s_memrealtime s[64:65]")
        e("    s_waitcnt lgkmcnt(0)")
        e(f"    v_writelane_b32 v19, s64, {idx}")
        e(f"L_cs{nst[0]}:")
    vKA, vVA = 4, 8
    vM, vMs, vMx, vAl, vTmp, vWs, vWl, vOa = 10, 11, 12, 13, 14, 15, 16, 17
    vOne, vLa, vO, vQ = 20, 24, 28, 36
    vP = 52
    vF = vP + 24
    vS = vF + 32
    vX, vML = vS + 32, vS + 48
    vPW, vPR = 0, 3
    NP = 2 if LOOP else 3
    vAc = 18
    vTiny = 2
    sSent, sOk = 56, 57
    nv = vS + 4 * NR
    if LW == 0:
        e(f"    s_sub_u32 s{sW}, s{sW}, 1")
    e(f"    v_lshlrev_b32 v{vTmp}, 4, v2")
    e(f"    v_lshl_add_u32 v{vTmp}, v3, 8, v{vTmp}    ; Q: i*256 + g*16")
    e(f"    s_lshl_b32 s{sT1}, s{sG}, 12")
    e(f"    s_mov_b32 s{sT0}, 0" if CP else f"    s_lshl_b32 s{sT0}, s{sG}, 16")
    e(f"    s_mov_b32 s{sQ+2}, 0x1000")
    e(f"    s_mov_b32 s{sQ+3}, 0x20000")
    e(f"    s_mov_b32 s{sWS+2}, {'0x800000' if CP else '0x10000'}")
    e(f"    s_mov_b32 s{sWS+3}, 0x20000")
    e(f"    s_mov_b32 s{sOUT+2}, 0x1000")
    e(f"    s_mov_b32 s{sOUT+3}, 0x20000")
    e(f"    s_mul_i32 s{sT2}, s{sW}, 1536")
    e(f"    v_lshl_add_u32 v{vWs}, v1, 4, s{sT2}")
    e(f"    v_lshl_add_u32 v{vWl}, v1, 3, s{sT2}")
    e(f"    s_mov_b32 s{sSent}, 0x80008000")
    vSent = vF + 24 if XL else vF
    sD, sSh, sMode, sFar, sG4 = 16, 20, 21, 22, 23
    for j in range(4):
        e(f"    v_mov_b32 v{vSent+j}, s{sSent}")
    nsel = [0]
    def wstore(d4, d2, rb=False):
        def both(pol):
            so = sFar if XL == 2 and pol else sOff
            if d4 is not None:
                e(f"    buffer_store_dwordx4 {r4(d4)}, v{vWs}, {srd(sWS)}, s{so} offen {pol}")
            if d2 is not None:
                e(f"    buffer_store_dwordx2 {r2(d2)}, v{vWl}, {srd(sWS)}, s{so} offen offset:1024 {pol}")
                if XL == 2 and pol:
                    dbgaddr()
                    e(f"    s_lshl2_add_u32 s{sT1}, s{sSp}, s{sW}")
                    e(f"    s_lshl_b32 s{sT1}, 0x100, s{sT1}")
                    e("    s_waitcnt vmcnt(0)")
                    e(f"    s_atomic_add s{sT1}, s[12:13], 0 glc")
                    e("    s_waitcnt lgkmcnt(0)")
        if not XL:
            return both(SPOL)
        nsel[0] += 1
        e(f"    s_cmp_eq_u32 s{sMode}, {XF}" if XL == 1 else f"    s_cmp_eq_u32 s{sMode}, s{sSh}")
        e(f"    s_cbranch_scc1 L_near{nsel[0]}")
        both("sc1")
        e(f"    s_branch L_stored{nsel[0]}")
        e(f"L_near{nsel[0]}:")
        both("")
        if rb:
            e(f"    buffer_load_dwordx4 {r4(vF+16)}, v{vWs}, {srd(sWS)}, s{sOff} offen {'sc1' if rb == 1 else 'nt'}")
            e(f"    buffer_load_dwordx2 {r2(vF+20)}, v{vWl}, {srd(sWS)}, s{sOff} offen offset:1024 {'sc1' if rb == 1 else 'nt'}")
        e(f"L_stored{nsel[0]}:")
    if CP:
        e(f"    s_mul_i32 s{sOff}, s{sG}, 3")
        e(f"    s_add_u32 s{sOff}, s{sOff}, s{sSp}")
        e(f"    s_mul_i32 s{sOff}, s{sOff}, 6144")
        e(f"    s_add_u32 s{sOff}, s{sOff}, 0x400000")
    else:
        e(f"    s_lshl_b32 s{sOff}, s{sSp}, 14")
    e("    s_waitcnt lgkmcnt(0)")
    e(f"    s_add_u32 s{sQ}, s4, s{sT1}")
    e(f"    s_addc_u32 s{sQ+1}, s5, 0")
    e(f"    s_add_u32 s{sWS}, s14, s{sT0}")
    e(f"    s_addc_u32 s{sWS+1}, s15, 0")
    e(f"    s_add_u32 s{sOUT}, s10, s{sT1}")
    e(f"    s_addc_u32 s{sOUT+1}, s11, 0")
    for s in range(4):
        e(f"    buffer_load_dwordx4 {r4(vQ+s*4)}, v{vTmp}, {srd(sQ)}, 0 offen offset:{s*64}")
    if XL:
        assert LOOP
        e(f"    s_mov_b32 s{sD}, s12")
        e(f"    s_mov_b32 s{sD+1}, s13")
        e(f"    s_mov_b32 s{sD+2}, 256")
        e(f"    s_mov_b32 s{sD+3}, 0x20000")
        if XL == 1:
            xshift(sSh)
        else:
            e(f"    s_getreg_b32 s{sSh}, hwreg(HW_REG_XCC_ID, 0, 4)")
            e(f"    s_or_b32 s{sSh}, s{sSh}, {0x80 if XF == 4 else 0xc0}")
            e(f"    s_add_u32 s{sFar}, s{sOff}, {0x200000 if CP else 8192}")
        e(f"    s_lshl_b32 s{sG4}, s{sG}, 2")
        if ASK1:
            assert PUB >= 6
            e(f"    v_mov_b32 v{vF+22}, 0")
            e(f"    v_mov_b32 v{vF+23}, {FLAG}")
            e(f"    s_cmp_eq_u32 s{sW}, 0")
            e(f"    s_cselect_b32 s{sMode}, {16*I1}, -1")
            e(f"    s_cmp_eq_u32 s{sSp}, 3")
            e(f"    s_cselect_b32 s{sMode}, -1, s{sMode}")
    elif not NOSENT:
        wstore(vSent, vSent)
    e(f"    v_xor_b32 v{vMx}, v2, v3")
    e(f"    v_lshlrev_b32 v{vMx}, 4, v{vMx}")
    e(f"    v_lshl_add_u32 v{vKA}, v3, 8, v{vMx}")
    e(f"    s_lshl_b32 s{sT2}, s{sW}, 12")
    e(f"    v_add_u32 v{vKA}, s{sT2}, v{vKA}")
    for s in range(1, 4):
        e(f"    v_xor_b32 v{vKA+s}, {s*64}, v{vKA}")
    e(f"    v_lshrrev_b32 v{vMx}, 2, v1               ; key (0..15)")
    e(f"    v_bfe_u32 v{vAl}, v1, 1, 1")
    e(f"    s_lshl_b32 s{sT2}, s{sW}, 2")
    e(f"    v_or_b32 v{vAl}, s{sT2}, v{vAl}")
    e(f"    v_and_b32 v{vM}, 7, v{vMx}")
    e(f"    v_lshlrev_b32 v{vM}, 1, v{vM}")
    e(f"    v_xor_b32 v{vAl}, v{vAl}, v{vM}")
    e(f"    v_lshlrev_b32 v{vAl}, 4, v{vAl}")
    e(f"    v_lshl_add_u32 v{vAl}, v{vMx}, 8, v{vAl}")
    e(f"    v_and_b32 v{vM}, 1, v1")
    e(f"    v_lshl_add_u32 v{vVA}, v{vM}, 3, v{vAl}")
    e(f"    v_xor_b32 v{vVA+1}, 32, v{vVA}")
    e(f"    v_lshlrev_b32 v{vOa}, 8, v3")
    e(f"    v_lshl_add_u32 v{vOa}, v2, 3, v{vOa}")
    e(f"    s_lshl_b32 s{sT2}, s{sW}, 6")
    e(f"    v_add_u32 v{vOa}, s{sT2}, v{vOa}")
    c = (128 ** -0.5) * math.log2(math.e)
    e(f"    s_mov_b32 s{sC}, {hex(f2u(c))}      ; D^-0.5 * log2(e)")
    e(f"    s_mov_b32 s{sT2}, {PB}")
    e(f"    v_lshl_add_u32 v{vPR}, v1, 4, s{sT2}")
    e(f"    s_lshr_b32 s{sT0}, s{sW}, 1")
    e(f"    s_lshl_b32 s{sT0}, s{sT0}, 10")
    e(f"    s_and_b32 s{sT1}, s{sW}, 1")
    e(f"    s_lshl_b32 s{sT1}, s{sT1}, 3")
    e(f"    s_add_u32 s{sT0}, s{sT0}, s{sT1}")
    e(f"    v_add_u32 v{vPW}, s{sT0}, v{vPR}          ; P write: + (w>>1)*1024 + (w&1)*8")
    e(f"    s_mov_b32 s{sT2}, {MB}")
    e(f"    v_lshl_add_u32 v{vAc}, v1, 4, s{sT2}")
    e(f"    v_mov_b32 v{vTiny}, 0x00800000")
    e(f"    v_mov_b32 v{vM}, 0xff800000")
    for j in range(4):
        e(f"    v_mov_b32 v{vOne+j}, 0x3f803f80")
        e(f"    v_mov_b32 v{vLa+j}, 0")
    for j in range(8):
        e(f"    v_mov_b32 v{vO+j}, 0")
    for k in range(1, 4):
        if CP:
            e(f"    s_sub_u32 s{sT0+k-1}, s{sOff}, {(4-k)*6144}")
            continue
        e(f"    s_add_u32 s{sT0+k-1}, s{sSp}, {k}")
        e(f"    s_and_b32 s{sT0+k-1}, s{sT0+k-1}, 3")
        e(f"    s_lshl_b32 s{sT0+k-1}, s{sT0+k-1}, 14")
    if STAMP == 3:
        e("    v_mov_b32 v19, 0")
        e("    v_writelane_b32 v19, s60, 0")
    cstamp(1)
    e(f"    s_waitcnt vmcnt({0 if NOSENT or XL else 2})")
    if XL == 2 and MK == 0:
        e(f"    s_cmp_lg_u32 s{sSp}, 3")
        e("    s_cbranch_scc1 L_nomark")
        for k in range(3):
            e(f"    buffer_store_dwordx4 {r4(vSent)}, v{vWs}, {srd(sWS)}, s{sT0+k} offen")
            e(f"    buffer_store_dwordx2 {r2(vSent)}, v{vWl}, {srd(sWS)}, s{sT0+k} offen offset:1024")
        e("L_nomark:")
    cstamp(2)
    def vread(r, fb):
        for ks in range(2):
            for db in range(2):
                for tt in range(2):
                    e(f"    ds_read_b64_tr_b16 {r2(fb+ks*8+db*4+tt*2)}, v{vVA+db} offset:{(r%4)*SLOT+(2*ks+tt)*4096}")
        if r % 4 == 3:
            for db in range(2):
                e(f"    v_xor_b32 v{vVA+db}, {4*SLOT}, v{vVA+db}")
    def pvm(r, fb, ks):
        for db in range(2):
            e(f"    v_mfma_f32_16x16x32_bf16 {r4(vO+db*4)}, {r4(fb+ks*8+db*4)}, {r4(vP+(r%NP)*8+ks*4)}, {r4(vO+db*4)}")
    def pread(r):
        for ks in range(2):
            e(f"    ds_read_b128 {r4(vP+(r%NP)*8+ks*4)}, v{vPR} offset:{(r%4)*2048+ks*1024}")
    def lsum(r):
        for ks in range(2):
            e(f"    v_mfma_f32_16x16x32_bf16 {r4(vLa)}, {r4(vOne)}, {r4(vP+(r%NP)*8+ks*4)}, {r4(vLa)}")
    def pmake(rs):
        for r in rs:
            for j in range(4):
                e(f"    v_fma_f32 v{vS+4*r+j}, v{vS+4*r+j}, s{sC}, -v{vMs}")
        for r in rs:
            for j in range(4):
                e(f"    v_exp_f32 v{vS+4*r+j}, v{vS+4*r+j}")
        e("    s_nop 0")
        for r in rs:
            for u in range(2):
                e(f"    v_cvt_pk_bf16_f32 v{vS+4*r+u}, v{vS+4*r+2*u}, v{vS+4*r+2*u+1}")
            e(f"    ds_write_b64 v{vPW}, {r2(vS+4*r)} offset:{(r%4)*2048}")
    def pv():
        vread(NR - 1, vF)
        e("    s_waitcnt lgkmcnt(4)")
        pvm(NR - 1, vF, 0)
        e("    s_waitcnt lgkmcnt(0)")
        pvm(NR - 1, vF, 1)
    def polls(guard=False):
        for k in range(3):
            if guard:
                e(f"    s_cmp_eq_u64 s[{sMiss+2*k}:{sMiss+2*k+1}], 0")
                e(f"    s_cbranch_scc1 L_have{k}")
            e(f"    buffer_load_dwordx4 {r4(vX+k*4)}, v{vWs}, {srd(sWS)}, s{sT0+k} offen {LPOL}")
            e(f"    buffer_load_dwordx2 {r2(vML+k*2)}, v{vWl}, {srd(sWS)}, s{sT0+k} offen offset:1024 {LPOL}")
            if guard:
                e(f"L_have{k}:")
    sMiss = 66
    def smax(r):
        e(f"    v_max3_f32 v{vM}, v{vS+4*r}, v{vS+4*r+1}, v{vM}")
        e(f"    v_max3_f32 v{vM}, v{vS+4*r+2}, v{vS+4*r+3}, v{vM}")
    if LOOP:
        vT = vP
        def keep(t, dst):
            e(f"    v_max3_f32 v{vM}, v{t}, v{t+1}, v{vM}")
            e(f"    v_max3_f32 v{vM}, v{t+2}, v{t+3}, v{vM}")
            e(f"    s_set_gpr_idx_on s{sCnt}, gpr_idx(DST)")
            e("    s_nop 0")
            for j in range(4):
                e(f"    v_mov_b32 v{dst+j}, v{t+j}")
            e("    s_set_gpr_idx_off")
        for j in range(4):
            e(f"    v_mov_b32 v{vT+4+j}, v{vM}")
        e(f"    s_mov_b32 s{sCnt}, 0")
        e("L_pass1:")
        for u in range(4):
            e("    s_barrier")
            for q in range(4):
                e(f"    ds_read_b128 {r4(vF+q*4)}, v{vKA+q} offset:{u*SLOT}")
            if u == 3:
                for q in range(4):
                    e(f"    v_xor_b32 v{vKA+q}, {4*SLOT}, v{vKA+q}")
            for q in range(4):
                e(f"    s_waitcnt lgkmcnt({3-q})")
                e(f"    v_mfma_f32_16x16x32_bf16 {r4(vT+4*(u%2))}, {r4(vF+q*4)}, {r4(vQ+q*4)}, {'0' if q == 0 else r4(vT+4*(u%2))}")
            keep(vT + 4*((u+1) % 2), vS + 4*(u-1))
        e(f"    s_add_u32 s{sCnt}, s{sCnt}, 16")
        if XL:
            e(f"    s_cmp_lg_u32 s{sCnt}, s{sMode}" if ASK1 else f"    s_cmp_lg_u32 s{sCnt}, {16*I1}")
            e("    s_cbranch_scc1 L_noask")
            e(f"    v_mov_b32 v{vF+22}, {'0x49249240' if XL == 1 else 's%d' % sSh}" if NOASK else f"    buffer_load_dword v{vF+22}, off, {srd(sD)}, s{sG4} sc1")
            e("L_noask:")
        if XL == 1:
            e(f"    s_cmp_lg_u32 s{sCnt}, {16*I2}")
            e("    s_cbranch_scc1 L_nomark")
            e("    s_waitcnt vmcnt(0)")
            e(f"    v_readfirstlane_b32 s{sMode}, v{vF+22}")
            e("    s_nop 0")
            e(f"    s_lshr_b32 s{sMode}, s{sMode}, s{sSh}")
            e(f"    s_and_b32 s{sMode}, s{sMode}, 7")
            wstore(vSent, vSent, RB)
            e("L_nomark:")
        if XL == 2:
            assert PUB >= 4 * WT + 2 and (MK == 0 or WT > MK + 2)
            if MK:
                e(f"    s_cmp_lg_u32 s{sSp}, 3")
                e("    s_cbranch_scc1 L_nowait")
                if FILL:
                    assert WT > MK + 3
                    e("    s_waitcnt vmcnt(0)")
                    e(f"    s_sub_u32 s{sFar}, s{sCnt}, {16*MK}")
                    e(f"    s_cmp_ge_u32 s{sFar}, 48")
                    e("    s_cbranch_scc1 L_nofill")
                    e(f"    s_mul_i32 s{sFar}, s{sFar}, 384\n    s_add_u32 s{sFar}, s{sFar}, s{sT0}" if CP else f"    s_lshl_b32 s{sFar}, s{sFar}, 10")
                    e(f"    buffer_load_dwordx4 {r4(vF+16)}, v{vWs}, {srd(sWS)}, s{sFar} offen {FPOL}")
                    e(f"    buffer_load_dwordx2 {r2(vF+20)}, v{vWl}, {srd(sWS)}, s{sFar} offen offset:1024 {FPOL}")
                    e("L_nofill:")
                e(f"    s_sub_u32 s{sFar}, s{sCnt}, {16*(MK+FILL)}")
                e(f"    s_cmp_ge_u32 s{sFar}, 48")
                e("    s_cbranch_scc1 L_nomark")
                e(f"    s_mul_i32 s{sFar}, s{sFar}, 384\n    s_add_u32 s{sFar}, s{sFar}, s{sT0}" if CP else f"    s_lshl_b32 s{sFar}, s{sFar}, 10")
                e(f"    buffer_store_dwordx4 {r4(vSent)}, v{vWs}, {srd(sWS)}, s{sFar} offen")
                e(f"    buffer_store_dwordx2 {r2(vSent)}, v{vWl}, {srd(sWS)}, s{sFar} offen offset:1024")
                e("L_nomark:")
            e(f"    s_cmp_lg_u32 s{sCnt}, {16*WT}")
            e("    s_cbranch_scc1 L_nowait")
            e("    s_waitcnt vmcnt(0)")
            e("L_nowait:")
        e(f"    s_cmp_lt_u32 s{sCnt}, {4*NR}")
        e("    s_cbranch_scc1 L_pass1")
        e("    s_waitcnt vmcnt(0)")
        if ASK1:
            e(f"    s_cmp_lg_u32 s{sW}, 0")
            e("    s_cbranch_scc1 L_noshare")
            e(f"    ds_write_b32 v{vF+23}, v{vF+22}")
            e("L_noshare:")
        elif XL == 2:
            e(f"    v_readfirstlane_b32 s{sMode}, v{vF+22}")
        for j in range(4):
            e(f"    v_mov_b32 v{vS+4*(NR-1)+j}, v{vT+4+j}")
        if XL == 2 and not ASK1:
            e(f"    s_and_b32 s{sMode}, s{sMode}, 0xff")
        e(f"    s_lshl_b32 s{sCnt}, s{sW}, 2")
        e(f"    v_add_u32 v{vMx}, s{sCnt}, v{vAc}")
        smax(NR - 1)
    else:
        for r in range(NR):
            if r == LATE:
                e("    s_waitcnt vmcnt(0)")
            e("    s_barrier")
            for q in range(4):
                e(f"    ds_read_b128 {r4(vF+q*4)}, v{vKA+q} offset:{(r%4)*SLOT}")
            if r % 4 == 3:
                for q in range(4):
                    e(f"    v_xor_b32 v{vKA+q}, {4*SLOT}, v{vKA+q}")
            for q in range(4):
                e(f"    s_waitcnt lgkmcnt({3-q})")
                e(f"    v_mfma_f32_16x16x32_bf16 {r4(vS+4*r)}, {r4(vF+q*4)}, {r4(vQ+q*4)}, {'0' if q == 0 else r4(vS+4*r)}")
            if r:
                smax(r - 1)
        e(f"    s_lshl_b32 s{sCnt}, s{sW}, 2")
        e(f"    v_add_u32 v{vMx}, s{sCnt}, v{vAc}")
        e("    s_nop 3")
        smax(NR - 1)
    for sw in ("32", "16"):
        e(f"    v_mov_b32 v{vTmp}, v{vM}")
        e("    s_nop 1")
        e(f"    v_permlane{sw}_swap_b32 v{vTmp}, v{vM}")
        e("    s_nop 1")
        e(f"    v_max_f32 v{vM}, v{vTmp}, v{vM}")
    e(f"    ds_write_b32 v{vMx}, v{vM}")
    e("    s_waitcnt lgkmcnt(0)")
    e("    s_barrier")
    e(f"    ds_read_b128 {r4(vF)}, v{vAc}")
    if ASK1:
        e(f"    ds_read_u8 v{vF+22}, v{vF+23}")
    e("    s_waitcnt lgkmcnt(0)")
    if ASK1:
        e(f"    v_readfirstlane_b32 s{sMode}, v{vF+22}")
    e(f"    v_max3_f32 v{vM}, v{vF}, v{vF+1}, v{vF+2}")
    e(f"    v_max_f32 v{vM}, v{vM}, v{vF+3}")
    e(f"    v_mul_f32 v{vMs}, s{sC}, v{vM}")
    pmake([0, 1, 2])
    e("    s_waitcnt lgkmcnt(0)")
    e("    s_barrier")
    if LOOP:
        pread(0); pread(1)
        vread(0, vF)
        e("    s_waitcnt lgkmcnt(8)")
        lsum(0); lsum(1)
        e("    s_waitcnt lgkmcnt(0)")
        vread(1, vF + 16)
        pvm(0, vF, 0); pvm(0, vF, 1)
        pmake([3])
        pread(2)
        e("    s_waitcnt lgkmcnt(3)")
        pvm(1, vF + 16, 0); pvm(1, vF + 16, 1)
        e("    s_waitcnt lgkmcnt(0)")
        lsum(2)
        vPT = vP + 16
        e(f"    s_mov_b32 s{sCnt}, 0")
        e("L_pass2:")
        for r in range(2, 6):
            e("    s_barrier")
            vread(r, vF)
            pread(r + 1)
            e(f"    s_set_gpr_idx_on s{sCnt}, gpr_idx(SRC0)")
            e("    s_nop 0")
            for j in range(4):
                e(f"    v_fma_f32 v{vPT+j}, v{vS+4*(r+2)+j}, s{sC}, -v{vMs}")
            e("    s_set_gpr_idx_off")
            for j in range(4):
                e(f"    v_exp_f32 v{vPT+j}, v{vPT+j}")
            e("    s_nop 0")
            for u in range(2):
                e(f"    v_cvt_pk_bf16_f32 v{vPT+u}, v{vPT+2*u}, v{vPT+2*u+1}")
            e(f"    ds_write_b64 v{vPW}, {r2(vPT)} offset:{((r+2)%4)*2048}")
            e("    s_waitcnt lgkmcnt(7)")
            pvm(r, vF, 0)
            e("    s_waitcnt lgkmcnt(3)")
            pvm(r, vF, 1)
            e("    s_waitcnt lgkmcnt(0)")
            lsum(r + 1)
        e(f"    s_add_u32 s{sCnt}, s{sCnt}, 16")
        if WARM:
            assert WARM >= 4
            e(f"    s_add_u32 s{sTk}, s{sCnt}, s{sSp}")
            e(f"    s_cmp_lg_u32 s{sTk}, {16*WARM+3}")
            e("    s_cbranch_scc1 L_nowarm")
            polls()
            e("L_nowarm:")
        e(f"    s_cmp_lt_u32 s{sCnt}, {4*(NR-4)}")
        e("    s_cbranch_scc1 L_pass2")
    else:
        pread(0); pread(1); pread(2)
        vread(0, vF)
        e("    s_waitcnt lgkmcnt(8)")
        lsum(0); lsum(1); lsum(2)
        e("    s_waitcnt lgkmcnt(0)")
        vread(1, vF + 16)
        pvm(0, vF, 0); pvm(0, vF, 1)
        pmake([3])
        e("    s_waitcnt lgkmcnt(0)")
        pvm(1, vF + 16, 0); pvm(1, vF + 16, 1)
    for r in range(NR - 2 if LOOP else 2, NR - 1):
        if r == NR - 2 and XL != 2:
            e(f"    v_mov_b32 v{vTmp}, {FLAG}")
        e("    s_barrier")
        if r == NR - 2 and XL != 2:
            e(f"    ds_read_b32 v{vTmp}, v{vTmp}")
        vread(r, vF)
        pread(r + 1)
        wr = r + 2 < NR
        if wr:
            pmake([r + 2])
        e(f"    s_waitcnt lgkmcnt({6 + wr})")
        pvm(r, vF, 0)
        e(f"    s_waitcnt lgkmcnt({2 + wr})")
        pvm(r, vF, 1)
        e("    s_waitcnt lgkmcnt(0)")
        lsum(r + 1)
    e(f"    s_mov_b32 s{sTk}, s{sSp}" if XL == 2 else f"    v_readfirstlane_b32 s{sTk}, v{vTmp}")
    e("    s_nop 6")
    e(f"    v_log_f32 v{vAl}, v{vLa}")
    e(f"    v_rcp_f32 v{vLa}, v{vLa}                 ; 1/l")
    e(f"    s_add_u32 s{sOk}, s{sSent}, 0x8000")
    e(f"    v_add_f32 v{vAl}, v{vMs}, v{vAl}")
    cstamp(12)
    e(f"    s_cmp_eq_u32 s{sTk}, {7 if NOGA else 3}")
    e("    s_cbranch_scc1 L_gather")
    e("    s_barrier")
    cstamp(13)
    if STAMP:
        e("    s_memrealtime s[62:63]")
        e("    s_waitcnt lgkmcnt(0)")
    pv()
    cstamp(14)
    if NOST:
        e("    s_branch L_fin")
    e(f"    v_max_i32 v{vAl}, s{sOk}, v{vAl}")
    e(f"    v_mul_f32 v{vLa}, {hex(f2u(1.0/32767.0))}, v{vLa}")
    e("    s_nop 4")
    e(f"    v_max3_f32 v{vMx}, abs(v{vO}), abs(v{vO+1}), abs(v{vO+2})")
    e(f"    v_max3_f32 v{vTmp}, abs(v{vO+4}), abs(v{vO+5}), abs(v{vO+6})")
    e(f"    v_max3_f32 v{vMx}, abs(v{vO+3}), abs(v{vO+7}), v{vMx}")
    e(f"    v_max3_f32 v{vMx}, v{vMx}, v{vTmp}, v{vTiny}")
    e(f"    v_rcp_f32 v{vTmp}, v{vMx}")
    e("    s_nop 0")
    for j in range(8):
        e(f"    v_mul_f32 v{vS+j}, v{vTmp}, v{vO+j}")
    for j in range(4):
        e(f"    v_cvt_pknorm_i16_f32 v{vOne+j}, v{vS+2*j}, v{vS+2*j+1}")
    wstore(vOne, None)
    e(f"    v_add_f32 v{vM}, v{vS}, v{vS+1}")
    e(f"    v_add_f32 v{vTmp}, v{vS+2}, v{vS+3}")
    for j in range(2):
        e(f"    v_add_f32 v{vM}, v{vM}, v{vS+4+2*j}")
        e(f"    v_add_f32 v{vTmp}, v{vTmp}, v{vS+5+2*j}")
    e(f"    v_mul_f32 v{vMx}, v{vMx}, v{vLa}          ; scale / (32767 l)")
    e(f"    v_add_f32 v{vM}, v{vM}, v{vTmp}")
    e(f"    v_fma_f32 v{vMx}, v{vM}, 0, v{vMx}")
    e(f"    v_max_i32 v{vMx}, s{sOk}, v{vMx}")
    wstore(None, vMx)
    e("    s_branch L_fin")
    e("L_gather:")
    e(f"    s_mov_b32 s{sCnt}, {hex(PMAX)}")
    if PRE == 1:
        polls()
    e("    s_barrier")
    cstamp(13)
    if STAMP:
        e("    s_memrealtime s[62:63]")
        e("    s_waitcnt lgkmcnt(0)")
    if PRE == 2:
        polls()
    pv()
    cstamp(14)
    if PRE:
        e("    s_branch L_check")
    e("L_poll:")
    if XL == 2:
        e(f"    s_and_b32 s{sMode}, s{sCnt}, 15")
        e("    s_cbranch_scc1 L_poll2")
        e(f"    buffer_load_dword v{vTmp}, off, {srd(sD)}, s{sG4} sc1")
        e(f"    s_add_u32 s{sSh}, s{sW}, 8")
        e("    s_waitcnt vmcnt(0)")
        e(f"    v_readfirstlane_b32 s{sMode}, v{vTmp}")
        e("    s_nop 0")
        e(f"    s_lshr_b32 s{sMode}, s{sMode}, s{sSh}")
        e(f"    s_and_b32 s{sMode}, s{sMode}, 0x111")
        e("    s_cbranch_scc0 L_poll2")
        for k in range(3):
            e(f"    s_bfe_u32 s{sSh}, s{sMode}, {hex(0x10000 + 4*k)}")
            e(f"    s_lshl_b32 s{sSh}, s{sSh}, {21 if CP else 13}")
            e(f"    s_or_b32 s{sT0+k}, s{sT0+k}, s{sSh}")
        e("    buffer_inv sc1")
        e("    s_waitcnt vmcnt(0)")
        e("L_poll2:")
    polls(bool(PRE))
    e("L_check:")
    e(f"    s_sub_u32 s{sCnt}, s{sCnt}, 1")
    e("    s_cbranch_scc1 L_fin")
    e("    s_waitcnt vmcnt(0)")
    for k in range(3):
        e(f"    v_min3_i32 v{vS+k}, v{vX+4*k}, v{vX+4*k+1}, v{vX+4*k+2}")
        e(f"    v_min3_i32 v{vS+4+k}, v{vX+4*k+3}, v{vML+2*k}, v{vML+2*k+1}")
    for k in range(3):
        e(f"    v_min_i32 v{vS+k}, v{vS+k}, v{vS+4+k}")
    for k in range(3):
        e(f"    v_cmp_eq_u32 s[{sMiss+2*k}:{sMiss+2*k+1}], s{sSent}, v{vS+k}")
    e(f"    v_max3_f32 v{vM}, v{vML+1}, v{vML+3}, v{vML+5}")
    e(f"    v_max_f32 v{vM}, v{vM}, v{vAl}")
    e(f"    s_or_b64 vcc, s[{sMiss}:{sMiss+1}], s[{sMiss+2}:{sMiss+3}]")
    e(f"    s_or_b64 vcc, vcc, s[{sMiss+4}:{sMiss+5}]")
    if not NOCHK:
        e("    s_cbranch_scc1 L_poll")
    e(f"    v_sub_f32 v{vAl}, v{vAl}, v{vM}")
    for k in range(3):
        e(f"    v_sub_f32 v{vML+2*k+1}, v{vML+2*k+1}, v{vM}")
    e(f"    v_exp_f32 v{vAl}, v{vAl}")
    for k in range(3):
        e(f"    v_exp_f32 v{vML+2*k+1}, v{vML+2*k+1}")
    vU = vS
    for k in range(3):
        for j in range(4):
            for h in range(2):
                e(f"    v_cvt_f32_i32_sdwa v{vU+k*8+2*j+h}, sext(v{vX+4*k+j}) dst_sel:DWORD dst_unused:UNUSED_PAD src0_sel:WORD_{h}")
        if k == 0:
            e(f"    v_add_f32 v{vM}, v{vAl}, v{vML+1}")
            e(f"    v_add_f32 v{vTmp}, v{vML+3}, v{vML+5}")
            e(f"    v_add_f32 v{vM}, v{vM}, v{vTmp}")
            e(f"    v_rcp_f32 v{vM}, v{vM}")
            e(f"    v_mul_f32 v{vAl}, v{vAl}, v{vLa}")
            for kk in range(3):
                e(f"    v_mul_f32 v{vML+2*kk}, v{vML+2*kk}, v{vML+2*kk+1}")
    for j in range(8):
        e(f"    v_mul_f32 v{vO+j}, v{vAl}, v{vO+j}")
    for k in range(3):
        for j in range(8):
            e(f"    v_fmac_f32 v{vO+j}, v{vML+2*k}, v{vU+k*8+j}")
    for j in range(8):
        e(f"    v_mul_f32 v{vO+j}, v{vM}, v{vO+j}")
    for j in range(4):
        e(f"    v_cvt_pk_bf16_f32 v{vOne+j}, v{vO+2*j}, v{vO+2*j+1}")
    e(f"    buffer_store_dwordx2 {r2(vOne)}, v{vOa}, {srd(sOUT)}, 0 offen {OPOL}")
    e(f"    buffer_store_dwordx2 {r2(vOne+2)}, v{vOa}, {srd(sOUT)}, 0 offen offset:32 {OPOL}")
    e("L_fin:")
    cstamp(15)
    if STAMP == 3:
        e("    s_waitcnt vmcnt(0)")
        cstamp(16)
        e(f"    s_cmp_lg_u32 s{sW}, 0")
        e("    s_cbranch_scc1 L_end")
        e(f"    s_add_u32 s{sT0}, s{sOff}, 15360")
        e("    v_lshlrev_b32 v21, 2, v1")
        e(f"    buffer_store_dword v19, v21, {srd(sWS)}, s{sT0} offen")
    if STAMP:
        e("    s_waitcnt vmcnt(0)")
        e("    s_memrealtime s[64:65]")
        e(f"    s_cmp_lg_u32 s{sW}, 0")
        e("    s_cbranch_scc1 L_end")
        e("    s_waitcnt lgkmcnt(0)")
        e("    s_mov_b64 exec, 1")
        e("    v_mov_b32 v20, s60")
        e("    v_mov_b32 v21, s62")
        e("    v_mov_b32 v22, s64")
        e("    s_getreg_b32 s58, hwreg(HW_REG_XCC_ID)")
        e("    v_mov_b32 v23, s58")
        e(f"    v_mov_b32 v{vTmp}, 16320")
        if CP:
            e(f"    s_lshl2_add_u32 s{sOff}, s{sG}, s{sSp}")
            e(f"    s_lshl_b32 s{sOff}, s{sOff}, 14")
        e(f"    buffer_store_dwordx4 v[20:23], v{vTmp}, {srd(sWS)}, s{sOff} offen")
    e("L_end:")
    e("    s_endpgm")
    e('.section .rodata,"a"')
    e(".p2align 6")
    e(f".amdhsa_kernel {NAME}_kernel")
    e(f"  .amdhsa_next_free_vgpr {nv}")
    e("  .amdhsa_next_free_sgpr 72")
    e(f"  .amdhsa_accum_offset {(nv+3)//4*4}")
    e("  .amdhsa_group_segment_fixed_size 0")
    e("  .amdhsa_kernarg_size 48")
    e("  .amdhsa_user_sgpr_count 2")
    e("  .amdhsa_user_sgpr_kernarg_segment_ptr 1")
    e("  .amdhsa_system_sgpr_workgroup_id_x 1")
    e(".end_amdhsa_kernel")
    return "\n".join(L) + "\n"

if __name__ == "__main__":
    kw = {}
    for a in sys.argv[2:]:
        k, v = a.split("=")
        kw[k] = v.replace("_", " ") if "POL" in k or k == "SCH" else int(v)
    open(sys.argv[1], "w").write(gen(**kw))
```

```python
import sys, math
from gen import HEADER, NAME, f2u

def gen(C=16, N=20, GI=4, WGMAP=1, POL="nt", STAMP=0, TK=2, PRIO=1, LW=0, NOSW=0, NOC=0, W=1, ROT=0, NOSENT=0, NOTK=0, OPOL="", LATE=4, PRE=1, N2=0, SPOL="sc1", LPOL="sc1", NOST=0, NOCHK=0, NOGA=0, ROT2=0, ROTS=0, A=0, RX=0, N3=0, R3=4, N0=0, R0=4, QB=12, ORD=0, GG=0, SCH='', LOOP=0, XL=0, XP=1, I1=3, I2=5, RB=1, XF=4, NOASK=0, NOANN=0, PMAX=0x40000, ANN3=0, ASK1=0, PUB=7, MK=0, WT=1, WARM=0, FILL=0, FPOL='', CP=0, LA=0):
    L = []
    e = L.append
    NR = 512 // C
    NT = C // 4
    SLOT = C * 1024
    assert C == 16 and C < N <= 2 * C
    PB = 8 * SLOT
    MB = PB + 8192
    FLAG = MB + 1024
    lds = FLAG + 64
    srd = lambda x: f"s[{x}:{x+3}]"
    r4 = lambda x: f"v[{x}:{x+3}]"
    r2 = lambda x: f"v[{x}:{x+1}]"
    sK, sV, sQ, sWS, sOUT = 16, 20, 24, 28, 32
    sW, sG, sSp, sCnt, sOff, sO2, sC, sLds, sT0, sT1, sT2, sLin, sTk = 40, 41, 42, 43, 44, 45, 46, 47, 48, 49, 50, 51, 52
    e(HEADER + f"; @launch grid=(256,1,1) block=(320,1,1) lds={lds}")
    e('.amdgcn_target "amdgcn-amd-amdhsa--gfx950"')
    e(".text")
    e(f".globl {NAME}_kernel")
    e(".p2align 8")
    e(f".type {NAME}_kernel,@function")
    e(f"{NAME}_kernel:")
    e("    s_cmp_ge_u32 s2, 256")
    e("    s_cbranch_scc1 L_end")
    e("    s_load_dwordx4 s[4:7], s[0:1], 0")
    e("    s_load_dwordx4 s[8:11], s[0:1], 16")
    e("    s_load_dwordx4 s[12:15], s[0:1], 32")
    if STAMP:
        e("    s_memrealtime s[60:61]")
    e("    v_lshrrev_b32 v2, 6, v0")
    e("    v_and_b32 v1, 63, v0                 ; lane")
    e(f"    v_readfirstlane_b32 s{sW}, v2")
    if WGMAP == 0:
        e(f"    s_lshr_b32 s{sG}, s2, 2")
        e(f"    s_and_b32 s{sSp}, s2, 3")
    elif WGMAP == 1:
        e(f"    s_and_b32 s{sG}, s2, 63")
        e(f"    s_lshr_b32 s{sSp}, s2, 6")
    elif WGMAP == 2:
        e(f"    s_and_b32 s{sG}, s2, 7")
        e(f"    s_lshr_b32 s{sT0}, s2, 5")
        e(f"    s_lshl_b32 s{sG}, s{sG}, 3")
        e(f"    s_or_b32 s{sG}, s{sG}, s{sT0}")
        e(f"    s_bfe_u32 s{sSp}, s2, 0x20003")
    elif WGMAP == 3:
        e(f"    s_lshr_b32 s{sT0}, s2, 1")
        e(f"    s_xor_b32 s{sT0}, s{sT0}, s2")
        e(f"    s_and_b32 s{sT0}, s{sT0}, 1")
        e(f"    s_lshr_b32 s{sG}, s2, 3")
        e(f"    s_lshl_b32 s{sG}, s{sG}, 1")
        e(f"    s_or_b32 s{sG}, s{sG}, s{sT0}")
        e(f"    s_bfe_u32 s{sSp}, s2, 0x20001")
    e("    v_lshrrev_b32 v2, 4, v1              ; g = lane>>4")
    e("    v_and_b32 v3, 15, v1                 ; i = lane&15")
    e(f"    s_cmp_lg_u32 s{sW}, {LW}")
    e("    s_cbranch_scc1 L_consumer")
    vKo, vVo = 4, 8
    e("    v_xor_b32 v10, v3, v2")
    e("    v_lshlrev_b32 v10, 4, v10")
    e(f"    v_lshl_add_u32 v{vKo}, v2, 8, v10")
    e(f"    s_lshl_b32 s{sT0}, s{sG}, 21")
    if GG:
        e(f"    s_and_b32 s{sT0}, s{sT0}, {hex(0xffffffff ^ ((1 << (21+GG)) - 1))}")
    e(f"    s_mov_b32 s{sK+2}, {hex(0x200000 << GG)}")
    e(f"    s_mov_b32 s{sK+3}, 0x20000")
    sPos, sBase = 55, 53
    e(f"    s_lshl_b32 s{sBase}, s{sSp}, {14+A}")
    if GG:
        e(f"    s_and_b32 s{sT1}, s{sG}, {(1 << GG) - 1}")
        e(f"    s_lshl_b32 s{sT1}, s{sT1}, 16")
        e(f"    s_or_b32 s{sBase}, s{sBase}, s{sT1}")
    def mkoff():
        e(f"    s_and_b32 s{sPos}, s{sPos}, {NR-1}")
        if A == 0:
            e(f"    s_lshl_b32 s{sOff}, s{sPos}, {16+GG}")
        else:
            e(f"    s_lshr_b32 s{sOff}, s{sPos}, {A}")
            e(f"    s_lshl_b32 s{sOff}, s{sOff}, {16+A}")
            e(f"    s_and_b32 s{sO2}, s{sPos}, {(1<<A)-1}")
            e(f"    s_lshl_b32 s{sO2}, s{sO2}, 14")
            e(f"    s_or_b32 s{sOff}, s{sOff}, s{sO2}")
        e(f"    s_or_b32 s{sOff}, s{sOff}, s{sBase}")
        if QB > 12:
            e(f"    s_and_b32 s{sO2}, s{sOff}, {(1 << (QB+2)) - 1}")
            e(f"    s_xor_b32 s{sOff}, s{sOff}, s{sO2}")
            e(f"    s_lshr_b32 s{sO2}, s{sO2}, 2")
            e(f"    s_or_b32 s{sOff}, s{sOff}, s{sO2}")
    for j in range(1, 4):
        e(f"    v_xor_b32 v{vKo+j}, {j*64}, v{vKo}")
    e("    v_lshlrev_b32 v10, 1, v2")
    e("    v_xor_b32 v10, v3, v10")
    e("    v_lshlrev_b32 v10, 4, v10")
    e(f"    v_lshl_add_u32 v{vVo}, v2, 8, v10")
    e(f"    v_xor_b32 v{vVo+1}, 128, v{vVo}")
    e(f"    s_mov_b32 s{sV+2}, {hex(0x200000 << GG)}")
    e(f"    s_mov_b32 s{sV+3}, 0x20000")
    e(f"    s_mul_i32 s{sPos}, s{sG}, {ROT}")
    if GG:
        e(f"    s_lshr_b32 s{sPos}, s{sG}, {GG}")
        e(f"    s_mul_i32 s{sPos}, s{sPos}, {ROT}")
    if ROTS:
        e(f"    s_lshr_b32 s{sPos}, s{sPos}, {ROTS}")
    if RX:
        e(f"    s_lshr_b32 s{sT2}, s{sG}, 5")
        e(f"    s_mul_i32 s{sT2}, s{sT2}, {RX}")
        e(f"    s_add_u32 s{sPos}, s{sPos}, s{sT2}")
    if ROT2:
        e(f"    s_mul_i32 s{sT2}, s{sSp}, {ROT2}")
        e(f"    s_add_u32 s{sPos}, s{sPos}, s{sT2}")
    mkoff()
    if XL == 2:
        e(f"    s_cmp_eq_u32 s{sSp}, 3")
        e(f"    s_cselect_b32 s{sLin}, {PUB}, -1")
    else:
        e(f"    s_mov_b32 s{sLin}, {NR-TK}")
    e(f"    s_mov_b32 s{sLds}, 0")
    if NOSW:
        for j in range(6):
            e(f"    v_lshlrev_b32 v{vKo+j}, 4, v1")
    if PRIO:
        e(f"    s_setprio {PRIO}")
    e("    s_waitcnt lgkmcnt(0)")
    e(f"    s_add_u32 s{sK}, s6, s{sT0}")
    e(f"    s_addc_u32 s{sK+1}, s7, 0")
    e(f"    s_add_u32 s{sV}, s8, s{sT0}")
    e(f"    s_addc_u32 s{sV+1}, s9, 0")
    def lstamp(idx):
        if STAMP == 2:
            e("    s_memrealtime s[62:63]")
            e("    s_waitcnt lgkmcnt(0)")
            e(f"    v_writelane_b32 v20, s62, {idx}")
    if STAMP == 2:
        e("    v_mov_b32 v20, 0")
        e("    v_writelane_b32 v20, s60, 0")
        e("    s_mov_b32 s67, 4")
    lstamp(1)
    def dbgaddr():
        e(f"    s_lshl_b32 s{sT0}, s{sG}, 2")
        e(f"    s_add_u32 s12, s12, s{sT0}")
        e(f"    s_addc_u32 s13, s13, 0")
    def xshift(d):
        e(f"    s_getreg_b32 s{d}, hwreg(HW_REG_XCC_ID, 0, 3)")
        e(f"    s_mul_i32 s{d}, s{d}, 3")
        e(f"    s_add_u32 s{d}, s{d}, 4")
    def announce():
        dbgaddr()
        xshift(sT1)
        e(f"    s_lshl_b32 s{sT1}, 1, s{sT1}")
        if ANN3:
            e(f"    s_cmp_lg_u32 s{sSp}, 3")
            e("    s_cbranch_scc1 L_noann")
        if not NOANN:
            e(f"    s_atomic_add s{sT1}, s[12:13], 0 glc")
        e("L_noann:")
    if XL == 1 and XP == 0:
        announce()
    def ticket():
        if not XL:
            dbgaddr()
        e(f"    s_mov_b32 s{sTk}, 1")
        if NOTK:
            e(f"    s_mov_b32 s{sTk}, s{sSp}")
        else:
            e(f"    s_atomic_add s{sTk}, s[12:13], 0 glc")
    stages = ([(0, N0, 0, R0), (0, N, R0, NR)] if N0 else [(0, N, 0, NR)]) + ([(1, N2 or N, 0, NR - R3), (1, N3, NR - R3, NR)] if N3 else [(1, N2 or N, 0, NR)])
    if SCH:
        stages = []
        for st, part in enumerate(SCH.split("/")):
            r0 = 0
            for x in part.split(","):
                cnt, n = map(int, x.split("x"))
                assert 1 <= n <= 32
                stages.append((st, n, r0, r0 + cnt)); r0 += cnt
            assert r0 == NR
        assert stages[0][3] >= 2
    for si, (st, n, r0, r1) in enumerate(stages):
        if r0 == 0:
            e(f"    s_mov_b32 s{sCnt}, 0")
        e(f"L_load{si}:")
        for j in range(C):
            q, jj = (j % 4, j // 4) if ORD else (j // 4, j % 4)
            if ORD or jj == 0:
                e(f"    s_add_u32 m0, s{sLds}, {q*4096}")
                e(f"    s_add_u32 s{sO2}, s{sOff}, {q << QB}")
            e(f"    s_waitcnt vmcnt({n-1})")
            if j == max(0, n - 1 - C):
                if si == 0:
                    e(f"    s_cmp_lt_u32 s{sCnt}, 2")
                    e("    s_cbranch_scc1 L_nobar")
                e("    s_barrier")
                if si == 0:
                    e("L_nobar:")
            vo = vKo + jj if st == 0 else vVo + (jj % 2)
            e(f"    buffer_load_dwordx4 v{vo}, {srd(sK if st == 0 else sV)}, s{sO2} offen offset:{jj*1024} {POL} lds")
        e(f"    s_add_u32 s{sLds}, s{sLds}, {SLOT}")
        e(f"    s_and_b32 s{sLds}, s{sLds}, {PB-1}")
        e(f"    s_add_u32 s{sPos}, s{sPos}, 1")
        mkoff()
        if XL == 2 and st == 0 and r0 <= PUB < r1:
            e(f"    s_cmp_lg_u32 s{sCnt}, s{sLin}")
            e("    s_cbranch_scc1 L_nopub")
            dbgaddr()
            e(f"    s_getreg_b32 s{sT1}, hwreg(HW_REG_XCC_ID, 0, 4)")
            e(f"    s_or_b32 s{sT1}, s{sT1}, 0x80")
            if not NOANN:
                e(f"    s_atomic_add s{sT1}, s[12:13], 0 glc")
            e("L_nopub:")
        if st == 1 and r1 == NR and XL != 2:
            assert r0 <= NR - TK and W == 1 and R0 >= 2
            e(f"    s_cmp_lg_u32 s{sCnt}, s{sLin}")
            e("    s_cbranch_scc1 L_notk")
            ticket()
            e("L_notk:")
        e(f"    s_add_u32 s{sCnt}, s{sCnt}, 1")
        e(f"    s_cmp_lt_u32 s{sCnt}, {r1}")
        e(f"    s_cbranch_scc1 L_load{si}")
        if XL == 1 and XP == 1 and si == 0:
            assert r1 <= 4
            announce()
    if XL != 2:
        e(f"    v_mov_b32 v11, {FLAG}")
        e("    s_waitcnt lgkmcnt(0)")
        if XL:
            e(f"    s_and_b32 s{sTk}, s{sTk}, 7")
        e(f"    v_mov_b32 v10, s{sTk}")
        e("    ds_write_b32 v11, v10")
    e(f"    s_waitcnt vmcnt({C}) lgkmcnt(0)")
    e("    s_barrier")
    e("    s_waitcnt vmcnt(0)")
    e("    s_barrier")
    if STAMP == 2:
        e("    s_mov_b32 m0, s67")
        lstamp("m0")
        e(f"    s_lshl_b32 s{sT0}, s{sG}, 16")
        e(f"    s_add_u32 s{sWS}, s14, s{sT0}")
        e(f"    s_addc_u32 s{sWS+1}, s15, 0")
        e(f"    s_mov_b32 s{sWS+2}, 0x10000")
        e(f"    s_mov_b32 s{sWS+3}, 0x20000")
        e(f"    s_lshl_b32 s{sT0}, s{sSp}, 14")
        e(f"    s_add_u32 s{sT0}, s{sT0}, 15360")
        e("    v_lshlrev_b32 v21, 2, v1")
        e(f"    buffer_store_dword v20, v21, {srd(sWS)}, s{sT0} offen")
    e("    s_endpgm")
    e("L_consumer:")
    nst = [0]
    def cstamp(idx, rnd=None):
        if STAMP != 3: return
        nst[0] += 1
        if rnd is not None:
            e(f"    s_cmp_lg_u32 s{sCnt}, {rnd}")
            e(f"    s_cbranch_scc1 L_cs{nst[0]}")
        e("    s_memrealtime s[64:65]")
        e("    s_waitcnt lgkmcnt(0)")
        e(f"    v_writelane_b32 v19, s64, {idx}")
        e(f"L_cs{nst[0]}:")
    vKA, vVA = 4, 8
    vM, vMs, vMx, vAl, vTmp, vWs, vWl, vOa = 10, 11, 12, 13, 14, 15, 16, 17
    vOne, vLa, vO, vQ = 20, 24, 28, 36
    vP = 52
    vF = vP + 24
    vS = vF + 32
    vX, vML = vS + 32, vS + 48
    vPW, vPR = 0, 3
    NP = 2 if LOOP else 3
    vAc = 18
    vTiny = 2
    sSent, sOk = 56, 57
    nv = vS + 4 * NR
    if LW == 0:
        e(f"    s_sub_u32 s{sW}, s{sW}, 1")
    e(f"    v_lshlrev_b32 v{vTmp}, 4, v2")
    e(f"    v_lshl_add_u32 v{vTmp}, v3, 8, v{vTmp}    ; Q: i*256 + g*16")
    e(f"    s_lshl_b32 s{sT1}, s{sG}, 12")
    e(f"    s_mov_b32 s{sT0}, 0" if CP else f"    s_lshl_b32 s{sT0}, s{sG}, 16")
    e(f"    s_mov_b32 s{sQ+2}, 0x1000")
    e(f"    s_mov_b32 s{sQ+3}, 0x20000")
    e(f"    s_mov_b32 s{sWS+2}, {'0x800000' if CP else '0x10000'}")
    e(f"    s_mov_b32 s{sWS+3}, 0x20000")
    e(f"    s_mov_b32 s{sOUT+2}, 0x1000")
    e(f"    s_mov_b32 s{sOUT+3}, 0x20000")
    e(f"    s_mul_i32 s{sT2}, s{sW}, 1536")
    e(f"    v_lshl_add_u32 v{vWs}, v1, 4, s{sT2}")
    e(f"    v_lshl_add_u32 v{vWl}, v1, 3, s{sT2}")
    e(f"    s_mov_b32 s{sSent}, 0x80008000")
    vSent = vF + 24 if XL else vF
    sD, sSh, sMode, sFar, sG4 = 16, 20, 21, 22, 23
    for j in range(4):
        e(f"    v_mov_b32 v{vSent+j}, s{sSent}")
    nsel = [0]
    def wstore(d4, d2, rb=False):
        def both(pol):
            so = sFar if XL == 2 and pol else sOff
            if d4 is not None:
                e(f"    buffer_store_dwordx4 {r4(d4)}, v{vWs}, {srd(sWS)}, s{so} offen {pol}")
            if d2 is not None:
                e(f"    buffer_store_dwordx2 {r2(d2)}, v{vWl}, {srd(sWS)}, s{so} offen offset:1024 {pol}")
                if XL == 2 and pol:
                    dbgaddr()
                    e(f"    s_lshl2_add_u32 s{sT1}, s{sSp}, s{sW}")
                    e(f"    s_lshl_b32 s{sT1}, 0x100, s{sT1}")
                    e("    s_waitcnt vmcnt(0)")
                    e(f"    s_atomic_add s{sT1}, s[12:13], 0 glc")
                    e("    s_waitcnt lgkmcnt(0)")
        if not XL:
            return both(SPOL)
        nsel[0] += 1
        e(f"    s_cmp_eq_u32 s{sMode}, {XF}" if XL == 1 else f"    s_cmp_eq_u32 s{sMode}, s{sSh}")
        e(f"    s_cbranch_scc1 L_near{nsel[0]}")
        both("sc1")
        e(f"    s_branch L_stored{nsel[0]}")
        e(f"L_near{nsel[0]}:")
        both("")
        if rb:
            e(f"    buffer_load_dwordx4 {r4(vF+16)}, v{vWs}, {srd(sWS)}, s{sOff} offen {'sc1' if rb == 1 else 'nt'}")
            e(f"    buffer_load_dwordx2 {r2(vF+20)}, v{vWl}, {srd(sWS)}, s{sOff} offen offset:1024 {'sc1' if rb == 1 else 'nt'}")
        e(f"L_stored{nsel[0]}:")
    if CP:
        e(f"    s_mul_i32 s{sOff}, s{sG}, 3")
        e(f"    s_add_u32 s{sOff}, s{sOff}, s{sSp}")
        e(f"    s_mul_i32 s{sOff}, s{sOff}, 6144")
        e(f"    s_add_u32 s{sOff}, s{sOff}, 0x400000")
    else:
        e(f"    s_lshl_b32 s{sOff}, s{sSp}, 14")
    e("    s_waitcnt lgkmcnt(0)")
    e(f"    s_add_u32 s{sQ}, s4, s{sT1}")
    e(f"    s_addc_u32 s{sQ+1}, s5, 0")
    e(f"    s_add_u32 s{sWS}, s14, s{sT0}")
    e(f"    s_addc_u32 s{sWS+1}, s15, 0")
    e(f"    s_add_u32 s{sOUT}, s10, s{sT1}")
    e(f"    s_addc_u32 s{sOUT+1}, s11, 0")
    for s in range(4):
        e(f"    buffer_load_dwordx4 {r4(vQ+s*4)}, v{vTmp}, {srd(sQ)}, 0 offen offset:{s*64}")
    if XL:
        assert LOOP
        e(f"    s_mov_b32 s{sD}, s12")
        e(f"    s_mov_b32 s{sD+1}, s13")
        e(f"    s_mov_b32 s{sD+2}, 256")
        e(f"    s_mov_b32 s{sD+3}, 0x20000")
        if XL == 1:
            xshift(sSh)
        else:
            e(f"    s_getreg_b32 s{sSh}, hwreg(HW_REG_XCC_ID, 0, 4)")
            e(f"    s_or_b32 s{sSh}, s{sSh}, {0x80 if XF == 4 else 0xc0}")
            e(f"    s_add_u32 s{sFar}, s{sOff}, {0x200000 if CP else 8192}")
        e(f"    s_lshl_b32 s{sG4}, s{sG}, 2")
        if ASK1:
            assert PUB >= 6
            e(f"    v_mov_b32 v{vF+22}, 0")
            e(f"    v_mov_b32 v{vF+23}, {FLAG}")
            e(f"    s_cmp_eq_u32 s{sW}, 0")
            e(f"    s_cselect_b32 s{sMode}, {16*I1}, -1")
            e(f"    s_cmp_eq_u32 s{sSp}, 3")
            e(f"    s_cselect_b32 s{sMode}, -1, s{sMode}")
    elif not NOSENT:
        wstore(vSent, vSent)
    e(f"    v_xor_b32 v{vMx}, v2, v3")
    e(f"    v_lshlrev_b32 v{vMx}, 4, v{vMx}")
    e(f"    v_lshl_add_u32 v{vKA}, v3, 8, v{vMx}")
    e(f"    s_lshl_b32 s{sT2}, s{sW}, 12")
    e(f"    v_add_u32 v{vKA}, s{sT2}, v{vKA}")
    for s in range(1, 4):
        e(f"    v_xor_b32 v{vKA+s}, {s*64}, v{vKA}")
    e(f"    v_lshrrev_b32 v{vMx}, 2, v1               ; key (0..15)")
    e(f"    v_bfe_u32 v{vAl}, v1, 1, 1")
    e(f"    s_lshl_b32 s{sT2}, s{sW}, 2")
    e(f"    v_or_b32 v{vAl}, s{sT2}, v{vAl}")
    e(f"    v_and_b32 v{vM}, 7, v{vMx}")
    e(f"    v_lshlrev_b32 v{vM}, 1, v{vM}")
    e(f"    v_xor_b32 v{vAl}, v{vAl}, v{vM}")
    e(f"    v_lshlrev_b32 v{vAl}, 4, v{vAl}")
    e(f"    v_lshl_add_u32 v{vAl}, v{vMx}, 8, v{vAl}")
    e(f"    v_and_b32 v{vM}, 1, v1")
    e(f"    v_lshl_add_u32 v{vVA}, v{vM}, 3, v{vAl}")
    e(f"    v_xor_b32 v{vVA+1}, 32, v{vVA}")
    e(f"    v_lshlrev_b32 v{vOa}, 8, v3")
    e(f"    v_lshl_add_u32 v{vOa}, v2, 3, v{vOa}")
    e(f"    s_lshl_b32 s{sT2}, s{sW}, 6")
    e(f"    v_add_u32 v{vOa}, s{sT2}, v{vOa}")
    c = (128 ** -0.5) * math.log2(math.e)
    e(f"    s_mov_b32 s{sC}, {hex(f2u(c))}      ; D^-0.5 * log2(e)")
    e(f"    s_mov_b32 s{sT2}, {PB}")
    e(f"    v_lshl_add_u32 v{vPR}, v1, 4, s{sT2}")
    e(f"    s_lshr_b32 s{sT0}, s{sW}, 1")
    e(f"    s_lshl_b32 s{sT0}, s{sT0}, 10")
    e(f"    s_and_b32 s{sT1}, s{sW}, 1")
    e(f"    s_lshl_b32 s{sT1}, s{sT1}, 3")
    e(f"    s_add_u32 s{sT0}, s{sT0}, s{sT1}")
    e(f"    v_add_u32 v{vPW}, s{sT0}, v{vPR}          ; P write: + (w>>1)*1024 + (w&1)*8")
    e(f"    s_mov_b32 s{sT2}, {MB}")
    e(f"    v_lshl_add_u32 v{vAc}, v1, 4, s{sT2}")
    e(f"    v_mov_b32 v{vTiny}, 0x00800000")
    e(f"    v_mov_b32 v{vM}, 0xff800000")
    for j in range(4):
        e(f"    v_mov_b32 v{vOne+j}, 0x3f803f80")
        e(f"    v_mov_b32 v{vLa+j}, 0")
    for j in range(8):
        e(f"    v_mov_b32 v{vO+j}, 0")
    for k in range(1, 4):
        if CP:
            e(f"    s_sub_u32 s{sT0+k-1}, s{sOff}, {(4-k)*6144}")
            continue
        e(f"    s_add_u32 s{sT0+k-1}, s{sSp}, {k}")
        e(f"    s_and_b32 s{sT0+k-1}, s{sT0+k-1}, 3")
        e(f"    s_lshl_b32 s{sT0+k-1}, s{sT0+k-1}, 14")
    if STAMP == 3:
        e("    v_mov_b32 v19, 0")
        e("    v_writelane_b32 v19, s60, 0")
    cstamp(1)
    e(f"    s_waitcnt vmcnt({0 if NOSENT or XL else 2})")
    if XL == 2 and MK == 0:
        e(f"    s_cmp_lg_u32 s{sSp}, 3")
        e("    s_cbranch_scc1 L_nomark")
        for k in range(3):
            e(f"    buffer_store_dwordx4 {r4(vSent)}, v{vWs}, {srd(sWS)}, s{sT0+k} offen")
            e(f"    buffer_store_dwordx2 {r2(vSent)}, v{vWl}, {srd(sWS)}, s{sT0+k} offen offset:1024")
        e("L_nomark:")
    cstamp(2)
    def vread(r, fb):
        for ks in range(2):
            for db in range(2):
                for tt in range(2):
                    e(f"    ds_read_b64_tr_b16 {r2(fb+ks*8+db*4+tt*2)}, v{vVA+db} offset:{(r%4)*SLOT+(2*ks+tt)*4096}")
        if r % 4 == 3:
            for db in range(2):
                e(f"    v_xor_b32 v{vVA+db}, {4*SLOT}, v{vVA+db}")
    def pvm(r, fb, ks):
        for db in range(2):
            e(f"    v_mfma_f32_16x16x32_bf16 {r4(vO+db*4)}, {r4(fb+ks*8+db*4)}, {r4(vP+(r%NP)*8+ks*4)}, {r4(vO+db*4)}")
    def pread(r):
        for ks in range(2):
            e(f"    ds_read_b128 {r4(vP+(r%NP)*8+ks*4)}, v{vPR} offset:{(r%4)*2048+ks*1024}")
    def lsum(r):
        for ks in range(2):
            e(f"    v_mfma_f32_16x16x32_bf16 {r4(vLa)}, {r4(vOne)}, {r4(vP+(r%NP)*8+ks*4)}, {r4(vLa)}")
    def pmake(rs):
        for r in rs:
            for j in range(4):
                e(f"    v_fma_f32 v{vS+4*r+j}, v{vS+4*r+j}, s{sC}, -v{vMs}")
        for r in rs:
            for j in range(4):
                e(f"    v_exp_f32 v{vS+4*r+j}, v{vS+4*r+j}")
        e("    s_nop 0")
        for r in rs:
            for u in range(2):
                e(f"    v_cvt_pk_bf16_f32 v{vS+4*r+u}, v{vS+4*r+2*u}, v{vS+4*r+2*u+1}")
            e(f"    ds_write_b64 v{vPW}, {r2(vS+4*r)} offset:{(r%4)*2048}")
    def pv():
        vread(NR - 1, vF)
        e("    s_waitcnt lgkmcnt(4)")
        pvm(NR - 1, vF, 0)
        e("    s_waitcnt lgkmcnt(0)")
        pvm(NR - 1, vF, 1)
    def polls(guard=False):
        for k in range(3):
            if guard:
                e(f"    s_cmp_eq_u64 s[{sMiss+2*k}:{sMiss+2*k+1}], 0")
                e(f"    s_cbranch_scc1 L_have{k}")
            e(f"    buffer_load_dwordx4 {r4(vX+k*4)}, v{vWs}, {srd(sWS)}, s{sT0+k} offen {LPOL}")
            e(f"    buffer_load_dwordx2 {r2(vML+k*2)}, v{vWl}, {srd(sWS)}, s{sT0+k} offen offset:1024 {LPOL}")
            if guard:
                e(f"L_have{k}:")
    sMiss = 66
    def smax(r):
        e(f"    v_max3_f32 v{vM}, v{vS+4*r}, v{vS+4*r+1}, v{vM}")
        e(f"    v_max3_f32 v{vM}, v{vS+4*r+2}, v{vS+4*r+3}, v{vM}")
    if LOOP:
        vT = vP
        def keep(t, dst):
            e(f"    v_max3_f32 v{vM}, v{t}, v{t+1}, v{vM}")
            e(f"    v_max3_f32 v{vM}, v{t+2}, v{t+3}, v{vM}")
            e(f"    s_set_gpr_idx_on s{sCnt}, gpr_idx(DST)")
            e("    s_nop 0")
            for j in range(4):
                e(f"    v_mov_b32 v{dst+j}, v{t+j}")
            e("    s_set_gpr_idx_off")
        for j in range(4):
            e(f"    v_mov_b32 v{vT+4+j}, v{vM}")
        e(f"    s_mov_b32 s{sCnt}, 0")
        e("L_pass1:")
        for u in range(4):
            e("    s_barrier")
            for q in range(4):
                e(f"    ds_read_b128 {r4(vF+q*4)}, v{vKA+q} offset:{u*SLOT}")
            if u == 3:
                for q in range(4):
                    e(f"    v_xor_b32 v{vKA+q}, {4*SLOT}, v{vKA+q}")
            for q in range(4):
                e(f"    s_waitcnt lgkmcnt({3-q})")
                e(f"    v_mfma_f32_16x16x32_bf16 {r4(vT+4*(u%2))}, {r4(vF+q*4)}, {r4(vQ+q*4)}, {'0' if q == 0 else r4(vT+4*(u%2))}")
            keep(vT + 4*((u+1) % 2), vS + 4*(u-1))
        e(f"    s_add_u32 s{sCnt}, s{sCnt}, 16")
        if XL and not LA:
            e(f"    s_cmp_lg_u32 s{sCnt}, s{sMode}" if ASK1 else f"    s_cmp_lg_u32 s{sCnt}, {16*I1}")
            e("    s_cbranch_scc1 L_noask")
            e(f"    v_mov_b32 v{vF+22}, {'0x49249240' if XL == 1 else 's%d' % sSh}" if NOASK else f"    buffer_load_dword v{vF+22}, off, {srd(sD)}, s{sG4} sc1")
            e("L_noask:")
        if XL == 1:
            e(f"    s_cmp_lg_u32 s{sCnt}, {16*I2}")
            e("    s_cbranch_scc1 L_nomark")
            e("    s_waitcnt vmcnt(0)")
            e(f"    v_readfirstlane_b32 s{sMode}, v{vF+22}")
            e("    s_nop 0")
            e(f"    s_lshr_b32 s{sMode}, s{sMode}, s{sSh}")
            e(f"    s_and_b32 s{sMode}, s{sMode}, 7")
            wstore(vSent, vSent, RB)
            e("L_nomark:")
        if XL == 2:
            assert PUB >= 4 * WT + 2 and (MK == 0 or WT > MK + 2)
            if MK:
                e(f"    s_cmp_lg_u32 s{sSp}, 3")
                e("    s_cbranch_scc1 L_nowait")
                if FILL:
                    assert WT > MK + 3
                    e("    s_waitcnt vmcnt(0)")
                    e(f"    s_sub_u32 s{sFar}, s{sCnt}, {16*MK}")
                    e(f"    s_cmp_ge_u32 s{sFar}, 48")
                    e("    s_cbranch_scc1 L_nofill")
                    e(f"    s_mul_i32 s{sFar}, s{sFar}, 384\n    s_add_u32 s{sFar}, s{sFar}, s{sT0}" if CP else f"    s_lshl_b32 s{sFar}, s{sFar}, 10")
                    e(f"    buffer_load_dwordx4 {r4(vF+16)}, v{vWs}, {srd(sWS)}, s{sFar} offen {FPOL}")
                    e(f"    buffer_load_dwordx2 {r2(vF+20)}, v{vWl}, {srd(sWS)}, s{sFar} offen offset:1024 {FPOL}")
                    e("L_nofill:")
                e(f"    s_sub_u32 s{sFar}, s{sCnt}, {16*(MK+FILL)}")
                e(f"    s_cmp_ge_u32 s{sFar}, 48")
                e("    s_cbranch_scc1 L_nomark")
                e(f"    s_mul_i32 s{sFar}, s{sFar}, 384\n    s_add_u32 s{sFar}, s{sFar}, s{sT0}" if CP else f"    s_lshl_b32 s{sFar}, s{sFar}, 10")
                e(f"    buffer_store_dwordx4 {r4(vSent)}, v{vWs}, {srd(sWS)}, s{sFar} offen")
                e(f"    buffer_store_dwordx2 {r2(vSent)}, v{vWl}, {srd(sWS)}, s{sFar} offen offset:1024")
                e("L_nomark:")
            e(f"    s_cmp_lg_u32 s{sCnt}, {16*WT}")
            e("    s_cbranch_scc1 L_nowait")
            e("    s_waitcnt vmcnt(0)")
            e("L_nowait:")
        e(f"    s_cmp_lt_u32 s{sCnt}, {4*NR}")
        e("    s_cbranch_scc1 L_pass1")
        e("    s_waitcnt vmcnt(0)")
        if LA:
            pass
        elif ASK1:
            e(f"    s_cmp_lg_u32 s{sW}, 0")
            e("    s_cbranch_scc1 L_noshare")
            e(f"    ds_write_b32 v{vF+23}, v{vF+22}")
            e("L_noshare:")
        elif XL == 2:
            e(f"    v_readfirstlane_b32 s{sMode}, v{vF+22}")
        for j in range(4):
            e(f"    v_mov_b32 v{vS+4*(NR-1)+j}, v{vT+4+j}")
        if XL == 2 and not ASK1:
            e(f"    s_and_b32 s{sMode}, s{sMode}, 0xff")
        e(f"    s_lshl_b32 s{sCnt}, s{sW}, 2")
        e(f"    v_add_u32 v{vMx}, s{sCnt}, v{vAc}")
        smax(NR - 1)
    else:
        for r in range(NR):
            if r == LATE:
                e("    s_waitcnt vmcnt(0)")
            e("    s_barrier")
            for q in range(4):
                e(f"    ds_read_b128 {r4(vF+q*4)}, v{vKA+q} offset:{(r%4)*SLOT}")
            if r % 4 == 3:
                for q in range(4):
                    e(f"    v_xor_b32 v{vKA+q}, {4*SLOT}, v{vKA+q}")
            for q in range(4):
                e(f"    s_waitcnt lgkmcnt({3-q})")
                e(f"    v_mfma_f32_16x16x32_bf16 {r4(vS+4*r)}, {r4(vF+q*4)}, {r4(vQ+q*4)}, {'0' if q == 0 else r4(vS+4*r)}")
            if r:
                smax(r - 1)
        e(f"    s_lshl_b32 s{sCnt}, s{sW}, 2")
        e(f"    v_add_u32 v{vMx}, s{sCnt}, v{vAc}")
        e("    s_nop 3")
        smax(NR - 1)
    for sw in ("32", "16"):
        e(f"    v_mov_b32 v{vTmp}, v{vM}")
        e("    s_nop 1")
        e(f"    v_permlane{sw}_swap_b32 v{vTmp}, v{vM}")
        e("    s_nop 1")
        e(f"    v_max_f32 v{vM}, v{vTmp}, v{vM}")
    e(f"    ds_write_b32 v{vMx}, v{vM}")
    e("    s_waitcnt lgkmcnt(0)")
    e("    s_barrier")
    e(f"    ds_read_b128 {r4(vF)}, v{vAc}")
    if ASK1 and not LA:
        e(f"    ds_read_u8 v{vF+22}, v{vF+23}")
    e("    s_waitcnt lgkmcnt(0)")
    if ASK1 and not LA:
        e(f"    v_readfirstlane_b32 s{sMode}, v{vF+22}")
    e(f"    v_max3_f32 v{vM}, v{vF}, v{vF+1}, v{vF+2}")
    e(f"    v_max_f32 v{vM}, v{vM}, v{vF+3}")
    e(f"    v_mul_f32 v{vMs}, s{sC}, v{vM}")
    pmake([0, 1, 2])
    e("    s_waitcnt lgkmcnt(0)")
    e("    s_barrier")
    if LOOP:
        pread(0); pread(1)
        vread(0, vF)
        e("    s_waitcnt lgkmcnt(8)")
        lsum(0); lsum(1)
        e("    s_waitcnt lgkmcnt(0)")
        vread(1, vF + 16)
        pvm(0, vF, 0); pvm(0, vF, 1)
        pmake([3])
        pread(2)
        e("    s_waitcnt lgkmcnt(3)")
        pvm(1, vF + 16, 0); pvm(1, vF + 16, 1)
        e("    s_waitcnt lgkmcnt(0)")
        lsum(2)
        vPT = vP + 16
        e(f"    s_mov_b32 s{sCnt}, 0")
        e("L_pass2:")
        for r in range(2, 6):
            e("    s_barrier")
            vread(r, vF)
            pread(r + 1)
            e(f"    s_set_gpr_idx_on s{sCnt}, gpr_idx(SRC0)")
            e("    s_nop 0")
            for j in range(4):
                e(f"    v_fma_f32 v{vPT+j}, v{vS+4*(r+2)+j}, s{sC}, -v{vMs}")
            e("    s_set_gpr_idx_off")
            for j in range(4):
                e(f"    v_exp_f32 v{vPT+j}, v{vPT+j}")
            e("    s_nop 0")
            for u in range(2):
                e(f"    v_cvt_pk_bf16_f32 v{vPT+u}, v{vPT+2*u}, v{vPT+2*u+1}")
            e(f"    ds_write_b64 v{vPW}, {r2(vPT)} offset:{((r+2)%4)*2048}")
            e("    s_waitcnt lgkmcnt(7)")
            pvm(r, vF, 0)
            e("    s_waitcnt lgkmcnt(3)")
            pvm(r, vF, 1)
            e("    s_waitcnt lgkmcnt(0)")
            lsum(r + 1)
        e(f"    s_add_u32 s{sCnt}, s{sCnt}, 16")
        if LA:
            assert ASK1 and 1 <= I1 <= 4
            e(f"    s_sub_u32 s{sTk}, s{sCnt}, s{sMode}")
            e(f"    s_cmp_lg_u32 s{sTk}, 0")
            e("    s_cbranch_scc1 L_noask")
            e(f"    buffer_load_dword v{vF+22}, off, {srd(sD)}, s{sG4} sc1")
            e("L_noask:")
            e(f"    s_cmp_lg_u32 s{sTk}, 32")
            e("    s_cbranch_scc1 L_noshare")
            e(f"    v_mov_b32 v{vF+23}, {FLAG}")
            e("    s_waitcnt vmcnt(0)")
            e(f"    ds_write_b32 v{vF+23}, v{vF+22}")
            e("L_noshare:")
        if WARM:
            assert WARM >= 4
            e(f"    s_add_u32 s{sTk}, s{sCnt}, s{sSp}")
            e(f"    s_cmp_lg_u32 s{sTk}, {16*WARM+3}")
            e("    s_cbranch_scc1 L_nowarm")
            polls()
            e("L_nowarm:")
        e(f"    s_cmp_lt_u32 s{sCnt}, {4*(NR-4)}")
        e("    s_cbranch_scc1 L_pass2")
    else:
        pread(0); pread(1); pread(2)
        vread(0, vF)
        e("    s_waitcnt lgkmcnt(8)")
        lsum(0); lsum(1); lsum(2)
        e("    s_waitcnt lgkmcnt(0)")
        vread(1, vF + 16)
        pvm(0, vF, 0); pvm(0, vF, 1)
        pmake([3])
        e("    s_waitcnt lgkmcnt(0)")
        pvm(1, vF + 16, 0); pvm(1, vF + 16, 1)
    for r in range(NR - 2 if LOOP else 2, NR - 1):
        if r == NR - 2 and (XL != 2 or LA):
            e(f"    v_mov_b32 v{vTmp}, {FLAG}")
        e("    s_barrier")
        if r == NR - 2 and (XL != 2 or LA):
            e(f"    ds_read_{'u8' if LA else 'b32'} v{vTmp}, v{vTmp}")
        vread(r, vF)
        pread(r + 1)
        wr = r + 2 < NR
        if wr:
            pmake([r + 2])
        e(f"    s_waitcnt lgkmcnt({6 + wr})")
        pvm(r, vF, 0)
        e(f"    s_waitcnt lgkmcnt({2 + wr})")
        pvm(r, vF, 1)
        e("    s_waitcnt lgkmcnt(0)")
        lsum(r + 1)
    if LA:
        e(f"    v_readfirstlane_b32 s{sMode}, v{vTmp}")
    e(f"    s_mov_b32 s{sTk}, s{sSp}" if XL == 2 else f"    v_readfirstlane_b32 s{sTk}, v{vTmp}")
    e("    s_nop 6")
    e(f"    v_log_f32 v{vAl}, v{vLa}")
    e(f"    v_rcp_f32 v{vLa}, v{vLa}                 ; 1/l")
    e(f"    s_add_u32 s{sOk}, s{sSent}, 0x8000")
    e(f"    v_add_f32 v{vAl}, v{vMs}, v{vAl}")
    cstamp(12)
    e(f"    s_cmp_eq_u32 s{sTk}, {7 if NOGA else 3}")
    e("    s_cbranch_scc1 L_gather")
    e("    s_barrier")
    cstamp(13)
    if STAMP:
        e("    s_memrealtime s[62:63]")
        e("    s_waitcnt lgkmcnt(0)")
    pv()
    cstamp(14)
    if NOST:
        e("    s_branch L_fin")
    e(f"    v_max_i32 v{vAl}, s{sOk}, v{vAl}")
    e(f"    v_mul_f32 v{vLa}, {hex(f2u(1.0/32767.0))}, v{vLa}")
    e("    s_nop 4")
    e(f"    v_max3_f32 v{vMx}, abs(v{vO}), abs(v{vO+1}), abs(v{vO+2})")
    e(f"    v_max3_f32 v{vTmp}, abs(v{vO+4}), abs(v{vO+5}), abs(v{vO+6})")
    e(f"    v_max3_f32 v{vMx}, abs(v{vO+3}), abs(v{vO+7}), v{vMx}")
    e(f"    v_max3_f32 v{vMx}, v{vMx}, v{vTmp}, v{vTiny}")
    e(f"    v_rcp_f32 v{vTmp}, v{vMx}")
    e("    s_nop 0")
    for j in range(8):
        e(f"    v_mul_f32 v{vS+j}, v{vTmp}, v{vO+j}")
    for j in range(4):
        e(f"    v_cvt_pknorm_i16_f32 v{vOne+j}, v{vS+2*j}, v{vS+2*j+1}")
    wstore(vOne, None)
    e(f"    v_add_f32 v{vM}, v{vS}, v{vS+1}")
    e(f"    v_add_f32 v{vTmp}, v{vS+2}, v{vS+3}")
    for j in range(2):
        e(f"    v_add_f32 v{vM}, v{vM}, v{vS+4+2*j}")
        e(f"    v_add_f32 v{vTmp}, v{vTmp}, v{vS+5+2*j}")
    e(f"    v_mul_f32 v{vMx}, v{vMx}, v{vLa}          ; scale / (32767 l)")
    e(f"    v_add_f32 v{vM}, v{vM}, v{vTmp}")
    e(f"    v_fma_f32 v{vMx}, v{vM}, 0, v{vMx}")
    e(f"    v_max_i32 v{vMx}, s{sOk}, v{vMx}")
    wstore(None, vMx)
    e("    s_branch L_fin")
    e("L_gather:")
    e(f"    s_mov_b32 s{sCnt}, {hex(PMAX)}")
    if PRE == 1:
        polls()
    e("    s_barrier")
    cstamp(13)
    if STAMP:
        e("    s_memrealtime s[62:63]")
        e("    s_waitcnt lgkmcnt(0)")
    if PRE == 2:
        polls()
    pv()
    cstamp(14)
    if PRE:
        e("    s_branch L_check")
    e("L_poll:")
    if XL == 2:
        e(f"    s_and_b32 s{sMode}, s{sCnt}, 15")
        e("    s_cbranch_scc1 L_poll2")
        e(f"    buffer_load_dword v{vTmp}, off, {srd(sD)}, s{sG4} sc1")
        e(f"    s_add_u32 s{sSh}, s{sW}, 8")
        e("    s_waitcnt vmcnt(0)")
        e(f"    v_readfirstlane_b32 s{sMode}, v{vTmp}")
        e("    s_nop 0")
        e(f"    s_lshr_b32 s{sMode}, s{sMode}, s{sSh}")
        e(f"    s_and_b32 s{sMode}, s{sMode}, 0x111")
        e("    s_cbranch_scc0 L_poll2")
        for k in range(3):
            e(f"    s_bfe_u32 s{sSh}, s{sMode}, {hex(0x10000 + 4*k)}")
            e(f"    s_lshl_b32 s{sSh}, s{sSh}, {21 if CP else 13}")
            e(f"    s_or_b32 s{sT0+k}, s{sT0+k}, s{sSh}")
        e("    buffer_inv sc1")
        e("    s_waitcnt vmcnt(0)")
        e("L_poll2:")
    polls(bool(PRE))
    e("L_check:")
    e(f"    s_sub_u32 s{sCnt}, s{sCnt}, 1")
    e("    s_cbranch_scc1 L_fin")
    e("    s_waitcnt vmcnt(0)")
    for k in range(3):
        e(f"    v_min3_i32 v{vS+k}, v{vX+4*k}, v{vX+4*k+1}, v{vX+4*k+2}")
        e(f"    v_min3_i32 v{vS+4+k}, v{vX+4*k+3}, v{vML+2*k}, v{vML+2*k+1}")
    for k in range(3):
        e(f"    v_min_i32 v{vS+k}, v{vS+k}, v{vS+4+k}")
    for k in range(3):
        e(f"    v_cmp_eq_u32 s[{sMiss+2*k}:{sMiss+2*k+1}], s{sSent}, v{vS+k}")
    e(f"    v_max3_f32 v{vM}, v{vML+1}, v{vML+3}, v{vML+5}")
    e(f"    v_max_f32 v{vM}, v{vM}, v{vAl}")
    e(f"    s_or_b64 vcc, s[{sMiss}:{sMiss+1}], s[{sMiss+2}:{sMiss+3}]")
    e(f"    s_or_b64 vcc, vcc, s[{sMiss+4}:{sMiss+5}]")
    if not NOCHK:
        e("    s_cbranch_scc1 L_poll")
    e(f"    v_sub_f32 v{vAl}, v{vAl}, v{vM}")
    for k in range(3):
        e(f"    v_sub_f32 v{vML+2*k+1}, v{vML+2*k+1}, v{vM}")
    e(f"    v_exp_f32 v{vAl}, v{vAl}")
    for k in range(3):
        e(f"    v_exp_f32 v{vML+2*k+1}, v{vML+2*k+1}")
    vU = vS
    for k in range(3):
        for j in range(4):
            for h in range(2):
                e(f"    v_cvt_f32_i32_sdwa v{vU+k*8+2*j+h}, sext(v{vX+4*k+j}) dst_sel:DWORD dst_unused:UNUSED_PAD src0_sel:WORD_{h}")
        if k == 0:
            e(f"    v_add_f32 v{vM}, v{vAl}, v{vML+1}")
            e(f"    v_add_f32 v{vTmp}, v{vML+3}, v{vML+5}")
            e(f"    v_add_f32 v{vM}, v{vM}, v{vTmp}")
            e(f"    v_rcp_f32 v{vM}, v{vM}")
            e(f"    v_mul_f32 v{vAl}, v{vAl}, v{vLa}")
            for kk in range(3):
                e(f"    v_mul_f32 v{vML+2*kk}, v{vML+2*kk}, v{vML+2*kk+1}")
    for j in range(8):
        e(f"    v_mul_f32 v{vO+j}, v{vAl}, v{vO+j}")
    for k in range(3):
        for j in range(8):
            e(f"    v_fmac_f32 v{vO+j}, v{vML+2*k}, v{vU+k*8+j}")
    for j in range(8):
        e(f"    v_mul_f32 v{vO+j}, v{vM}, v{vO+j}")
    for j in range(4):
        e(f"    v_cvt_pk_bf16_f32 v{vOne+j}, v{vO+2*j}, v{vO+2*j+1}")
    e(f"    buffer_store_dwordx2 {r2(vOne)}, v{vOa}, {srd(sOUT)}, 0 offen {OPOL}")
    e(f"    buffer_store_dwordx2 {r2(vOne+2)}, v{vOa}, {srd(sOUT)}, 0 offen offset:32 {OPOL}")
    e("L_fin:")
    cstamp(15)
    if STAMP == 3:
        e("    s_waitcnt vmcnt(0)")
        cstamp(16)
        e(f"    s_cmp_lg_u32 s{sW}, 0")
        e("    s_cbranch_scc1 L_end")
        e(f"    s_add_u32 s{sT0}, s{sOff}, 15360")
        e("    v_lshlrev_b32 v21, 2, v1")
        e(f"    buffer_store_dword v19, v21, {srd(sWS)}, s{sT0} offen")
    if STAMP:
        e("    s_waitcnt vmcnt(0)")
        e("    s_memrealtime s[64:65]")
        e(f"    s_cmp_lg_u32 s{sW}, 0")
        e("    s_cbranch_scc1 L_end")
        e("    s_waitcnt lgkmcnt(0)")
        e("    s_mov_b64 exec, 1")
        e("    v_mov_b32 v20, s60")
        e("    v_mov_b32 v21, s62")
        e("    v_mov_b32 v22, s64")
        e("    s_getreg_b32 s58, hwreg(HW_REG_XCC_ID)")
        e("    v_mov_b32 v23, s58")
        e(f"    v_mov_b32 v{vTmp}, 16320")
        if CP:
            e(f"    s_lshl2_add_u32 s{sOff}, s{sG}, s{sSp}")
            e(f"    s_lshl_b32 s{sOff}, s{sOff}, 14")
        e(f"    buffer_store_dwordx4 v[20:23], v{vTmp}, {srd(sWS)}, s{sOff} offen")
    e("L_end:")
    e("    s_endpgm")
    e('.section .rodata,"a"')
    e(".p2align 6")
    e(f".amdhsa_kernel {NAME}_kernel")
    e(f"  .amdhsa_next_free_vgpr {nv}")
    e("  .amdhsa_next_free_sgpr 72")
    e(f"  .amdhsa_accum_offset {(nv+3)//4*4}")
    e("  .amdhsa_group_segment_fixed_size 0")
    e("  .amdhsa_kernarg_size 48")
    e("  .amdhsa_user_sgpr_count 2")
    e("  .amdhsa_user_sgpr_kernarg_segment_ptr 1")
    e("  .amdhsa_system_sgpr_workgroup_id_x 1")
    e(".end_amdhsa_kernel")
    return "\n".join(L) + "\n"

if __name__ == "__main__":
    kw = {}
    for a in sys.argv[2:]:
        k, v = a.split("=")
        kw[k] = v.replace("_", " ") if "POL" in k or k == "SCH" else int(v)
    open(sys.argv[1], "w").write(gen(**kw))
```
